```python
import torch

def _softmax(x, axis=-1):
    return torch.softmax(x, dim=axis)
def _gelu(x):
    return torch.nn.functional.gelu(x, approximate="tanh")
def _silu(x):
    return torch.nn.functional.silu(x)
def _sigmoid(x):
    return torch.sigmoid(x)
def _layernorm(x, axis=-1, eps=1e-5):
    m = x.mean(dim=axis, keepdim=True)
    v = x.var(dim=axis, keepdim=True, unbiased=False)
    return (x - m) / torch.sqrt(v + eps)
def _scatter_add(tgt, idx, src, axis=0):
    return tgt.clone().index_add_(axis, idx, src)
def _segment_sum(src, seg, n):
    out = torch.zeros((n,) + src.shape[1:], dtype=src.dtype)
    return out.index_add_(0, seg, src)
def _pad(x, pw):
    flat = tuple(v for pair in reversed(pw) for v in pair)
    return torch.nn.functional.pad(x, flat)

kernel_name = 'sequential_preLN__linear_attn_block__glu_gated_glu__prompt'

def setup_inputs():

    _w = (lambda a: (lambda t: t.to(torch.bfloat16) if t.is_floating_point() else t)(torch.as_tensor(a)))
    def _A_setup():
        B, S, D = 1, 2048, 1024
        return {
            "x": _w((lambda *s: torch.randn(*s, dtype=torch.bfloat16) * 0.05)(B, S, D)),
            "wqkv": _w((lambda *s: torch.randn(*s, dtype=torch.bfloat16) * 0.05)(D, 3 * D)),
            "wo": _w((lambda *s: torch.randn(*s, dtype=torch.bfloat16) * 0.05)(D, D)),
        }
    _A_in = _A_setup()

    def _B_setup():
        B, S, D, F = 1, 2048, 1024, 3584
        return {
            "x": _w((lambda *s: torch.randn(*s, dtype=torch.bfloat16) * 0.05)(B, S, D)),
            "w_gate": _w((lambda *s: torch.randn(*s, dtype=torch.bfloat16) * 0.05)(D, F)),
            "w_up": _w((lambda *s: torch.randn(*s, dtype=torch.bfloat16) * 0.05)(D, F)),
            "w_down": _w((lambda *s: torch.randn(*s, dtype=torch.bfloat16) * 0.05)(F, D)),
        }
    _B_in = _B_setup()

    return {
        "A_x": _A_in["x"],
        "A_wqkv": _A_in["wqkv"],
        "A_wo": _A_in["wo"],
        "B_x": _B_in["x"],
        "B_w_gate": _B_in["w_gate"],
        "B_w_up": _B_in["w_up"],
        "B_w_down": _B_in["w_down"],
    }

def reference(A_x, A_wqkv, A_wo, B_x, B_w_gate, B_w_up, B_w_down):
    def _A_ref(x, wqkv, wo):
        B, S, D = x.shape
        H = 32; Dh = D // H
        qkv = (lambda x, *d: x.permute(*d))((x @ wqkv).reshape(B, S, 3, H, Dh), 2, 0, 3, 1, 4)
        q, k, v = qkv[0], qkv[1], qkv[2]
        phi = lambda t: torch.where(t > 0, t + 1, torch.exp(t)) + 1e-6
        pq, pk = phi(q), phi(k)
        kv = torch.einsum("bhsd,bhse->bhde", pk, v)
        z = torch.einsum("bhsd->bhd", pk)
        num = torch.einsum("bhqd,bhde->bhqe", pq, kv)
        den = torch.einsum("bhqd,bhd->bhq", pq, z)[..., None] + 1e-6
        o = num / den
        return (lambda x, *d: x.permute(*d))(o, 0, 2, 1, 3).reshape(B, S, D) @ wo

    def _B_ref(x, w_gate, w_up, w_down):
        g = torch.einsum("bsd,df->bsf", x, w_gate)
        u = torch.einsum("bsd,df->bsf", x, w_up)
        h = _sigmoid(g) * u
        return torch.einsum("bsf,fd->bsd", h, w_down)

    x = A_x
    h = x + _A_ref(_layernorm(x, axis=-1), A_wqkv, A_wo)
    h2 = h + _B_ref(_layernorm(h, axis=-1), B_w_gate, B_w_up, B_w_down)
    return h2
```

```python
import struct

def f2u(x):
    return struct.unpack('<I', struct.pack('<f', x))[0]

class Asm:
    def __init__(self):
        self.lines = []
        self.nlab = 0
    def __call__(self, s):
        for l in s.strip('\n').split('\n'):
            l = l.strip()
            if l:
                self.lines.append('    ' + l)
    def label(self, l):
        self.lines.append(l + ':')
    def raw(self, s):
        self.lines.append(s)
    def newlabel(self, p='L'):
        self.nlab += 1
        return '%s_%d' % (p, self.nlab)
    def text(self):
        return '\n'.join(self.lines) + '\n'

def vr(base, n=1, f='v'):
    return '%s%d' % (f, base) if n == 1 else '%s[%d:%d]' % (f, base, base + n - 1)
def ar(base, n=1):
    return vr(base, n, 'a')
def sr(base, n=1):
    return vr(base, n, 's')

class Reg:
    def __init__(self, f, base):
        self.f = f; self.base = base
    def __call__(self, off=0, n=1):
        return vr(self.base + off, n, self.f)

def kernel_begin(a, name):
    a.raw('.text')
    a.raw('.globl %s' % name)
    a.raw('.p2align 8')
    a.raw('.type %s,@function' % name)
    a.label(name)

def kernel_desc(a, name, nvgpr, nsgpr, accum):
    a.raw('.section .rodata,"a"')
    a.raw('.p2align 6')
    a.raw('.amdhsa_kernel %s' % name)
    a.raw('  .amdhsa_next_free_vgpr %d' % nvgpr)
    a.raw('  .amdhsa_next_free_sgpr %d' % nsgpr)
    a.raw('  .amdhsa_accum_offset %d' % accum)
    a.raw('  .amdhsa_group_segment_fixed_size 0')
    a.raw('  .amdhsa_kernarg_size 80')
    a.raw('  .amdhsa_user_sgpr_count 2')
    a.raw('  .amdhsa_user_sgpr_kernarg_segment_ptr 1')
    a.raw('  .amdhsa_system_sgpr_workgroup_id_x 1')
    a.raw('  .amdhsa_float_denorm_mode_32 3')
    a.raw('.end_amdhsa_kernel')

def srd(a, d, lo, hi, nbytes):
    if lo != 's%d' % d: a('s_mov_b32 s%d, %s' % (d, lo))
    if hi != 's%d' % (d + 1): a('s_mov_b32 s%d, %s' % (d + 1, hi))
    a('s_mov_b32 s%d, %s' % (d + 2, nbytes))
    a('s_mov_b32 s%d, 0x20000' % (d + 3))

def srd_off(a, d, ptr, off, nbytes):
    a('s_add_u32 s%d, s%d, %s' % (d, ptr, off))
    a('s_addc_u32 s%d, s%d, 0' % (d + 1, ptr + 1))
    a('s_mov_b32 s%d, %s' % (d + 2, nbytes))
    a('s_mov_b32 s%d, 0x20000' % (d + 3))

STAMP_OFF = 128 << 20
class Stamps:
    def __init__(self, on, kidx, sbase=70, nst=6):
        self.on = on; self.kidx = kidx; self.sbase = sbase; self.n = 0; self.nst = nst
    def take(self, a):
        if not self.on: return
        b = self.sbase + 4 * self.n
        assert self.n < self.nst
        a('s_memrealtime s[%d:%d]' % (b, b + 1))
        a('s_memtime s[%d:%d]' % (b + 2, b + 3))
        a('s_waitcnt lgkmcnt(0)')
        self.n += 1
    def flush(self, a, wsptr, wg, vtmp, tid):
        if not self.on: return
        a('v_cmp_eq_u32 vcc, 0, %s' % tid)
        a('s_and_saveexec_b64 s[68:69], vcc')
        l = a.newlabel('Lst')
        a('s_cbranch_execz %s' % l)
        a('s_lshl_b32 s67, %s, 7' % wg)
        a('s_add_u32 s67, s67, 0x%x' % (STAMP_OFF + self.kidx * 1024 * 128))
        a('v_mov_b32 v%d, s67' % (vtmp + 4))
        for i in range(self.n):
            b = self.sbase + 4 * i
            for j in range(4):
                a('v_mov_b32 v%d, s%d' % (vtmp + j, b + j))
            a('global_store_dwordx4 v%d, v[%d:%d], s[%d:%d] offset:%d' % (vtmp + 4, vtmp, vtmp + 3, wsptr, wsptr + 1, 16 * i))
            a('s_waitcnt vmcnt(0)')
        a.label(l)
        a('s_mov_b64 exec, s[68:69]')
```

```python
from asmlib import *

P_X, P_WQKV, P_WO, P_BX, P_WG, P_WU, P_WD, P_OUT, P_DBG, P_WS = 4, 6, 8, 10, 12, 14, 16, 18, 20, 22
S_WAVE = 24
SRD_W, SRD_X0, SRD_X1, SRD_A, SRD_B = 32, 36, 40, 44, 48
S_WOFF, S_XOFF, S_RD, S_WR, S_CNT, S_XOFF2 = 52, 53, 54, 55, 56, 57

WS_XN, WS_PQ, WS_O, WS_H, WS_HH = 0, 4 << 20, 8 << 20, 12 << 20, 16 << 20
WS_KVP, WS_ST2, WS_CS, WS_RSTD = 32 << 20, 36 << 20, 37 << 20, 38 << 20
LOG2E = 1.4426950408889634

def load_ptrs(a):
    a('s_load_dwordx16 s[4:19], s[0:1], 0')
    a('s_load_dwordx4 s[20:23], s[0:1], 64')

def wave_id(a, vtmp):
    a('v_lshrrev_b32 v%d, 6, v0' % vtmp)
    a('s_nop 0')
    a('v_readfirstlane_b32 s%d, v%d' % (S_WAVE, vtmp))

class Gemm:
    def __init__(self, NP, CB, KS, NST, NS, SB, PF, NX, D, RING,
                 acc, xr, wr, vX, vRdBase, vRd, dma, wpitch, rdoff, swap=None,
                 wr_wave_off='0', opt=None):
        self.__dict__.update(locals())
        self.TB = 2 * NP
        self.swap = swap or (lambda cb: False)
        self.opt = opt or {}
        self.static = vRd is None
        assert PF <= NS - 2 and PF <= NX - 1 and NST % NX == 0 and NX % 2 == 0
        assert (KS * CB * NX) % RING == 0 and D < RING
        if self.static: assert NS == NX and NS * SB <= 65536

    def vmem_ops(self, slot, pro=False):
        o = self.opt
        ops = []
        xs = []
        for ks in range(self.KS):
            for tb in range(self.TB):
                p, t = divmod(tb, 2)
                i = 2 * ks + t
                so = S_XOFF if i < 4 else S_XOFF2
                xs.append(([], 'buffer_load_dwordx4 %s, %s, s[%d:%d], s%d offen offset:%d %s' % (
                    self.xr(slot, ks, tb), self.vX, SRD_X0 + 4 * p, SRD_X0 + 4 * p + 3, so, (i & 3) * 1024, o.get('xflag', ''))))
        ds = []
        for (v, m0add, imm) in self.dma:
            if m0add is None:
                pre = []
            elif self.static:
                pre = ['s_add_u32 m0, %s, %d' % (self.wr_wave_off, m0add + slot * self.SB)]
            else:
                pre = ['s_add_u32 m0, s%d, %d' % (S_WR, m0add)]
            ds.append((pre, 'buffer_load_dwordx4 %s, s[%d:%d], s%d offen offset:%d %s lds' % (
                v, SRD_W, SRD_W + 3, S_WOFF, imm, o.get('wflag', ''))))
        if o.get('no_x') and not pro: xs = []
        if o.get('no_w') and not pro: ds = []
        i = j = 0
        while i < len(ds) or j < len(xs):
            if j >= len(xs) or (i < len(ds) and i * len(xs) <= j * len(ds)):
                ops.append(ds[i]); i += 1
            else:
                ops.append(xs[j]); j += 1
        return ops

    def advance(self):
        r = ['s_add_u32 s%d, s%d, %d' % (S_WOFF, S_WOFF, self.KS * 32 * self.wpitch),
             's_add_u32 s%d, s%d, %d' % (S_XOFF, S_XOFF, self.KS * 2048)]
        if self.KS > 2:
            r.append('s_add_u32 s%d, s%d, %d' % (S_XOFF2, S_XOFF2, self.KS * 2048))
        if self.static: return r, []
        return r, ['s_add_u32 s%d, s%d, %d' % (S_WR, S_WR, self.SB),
                   's_cmp_ge_u32 s%d, %d' % (S_WR, self.NS * self.SB),
                   's_cselect_b32 s%d, %s, s%d' % (S_WR, self.wr_wave_off, S_WR)]

    def rd_advance(self, par):
        if self.static: return [], []
        r = ['s_add_u32 s%d, s%d, %d' % (S_RD, S_RD, self.SB),
             's_cmp_ge_u32 s%d, %d' % (S_RD, self.NS * self.SB),
             's_cselect_b32 s%d, 0, s%d' % (S_RD, S_RD)]
        return r, ['v_add_u32 %s, s%d, %s' % (v, S_RD, b) for b, v in zip(self.vRdBase, self.vRd[par])]

    def read(self, gf, half):
        F = self.KS * self.CB
        st, f = divmod(gf, F)
        ks, cb = divmod(f, self.CB)
        idx, imm = self.rdoff(ks, cb, half)
        w = self.wr(gf % self.RING)
        if self.static:
            v = self.vRdBase[idx]; imm += (st % self.NS) * self.SB
        else:
            v = self.vRd[st & 1][idx]
        return 'ds_read_b64_tr_b16 %s, %s offset:%d' % (w(2 * half, 2), v, imm)

    def prologue_init(self, a):
        a('s_mov_b32 s%d, 0' % S_WOFF)
        a('s_mov_b32 s%d, 0' % S_XOFF)
        if self.KS > 2: a('s_mov_b32 s%d, 4096' % S_XOFF2)
        if not self.static:
            a('s_mov_b32 s%d, %s' % (S_WR, self.wr_wave_off))
            a('s_mov_b32 s%d, 0' % S_RD)

    def prologue_stage(self, a, s):
        for pre, op in self.vmem_ops(s % self.NX, True):
            for p in pre:
                a(p); a('s_nop 0')
            a(op)
        x, y = self.advance()
        for i in x + y: a(i)

    def nv(self):
        return len(self.vmem_ops(0, True))

    def prologue_start(self, a, younger):
        a('s_waitcnt vmcnt(%d)' % younger)
        a('s_barrier')
        if not self.static:
            for b, v in zip(self.vRdBase, self.vRd[0]):
                a('v_mov_b32 %s, %s' % (v, b))
        for gf in range(self.RING if self.opt.get('no_rd') else self.D):
            a(self.read(gf, 0)); a(self.read(gf, 1))

    def loop(self, a):
        o = self.opt
        TB, CB, KS, D = self.TB, self.CB, self.KS, self.D
        F = KS * CB
        a('s_mov_b32 s%d, %d' % (S_CNT, self.NST // self.NX))
        lab = a.newlabel('Lmain')
        if o.get('align'): a.raw('.p2align %d' % o['align'])
        a.label(lab)
        for u in range(self.NX):
            nm = F * TB
            gaps = [[] for _ in range(nm)]
            pre = [[] for _ in range(nm)]
            barpos = (F - D) * TB
            ops = self.vmem_ops((u + self.PF) % self.NX)
            nv = len(ops)
            lo, hi = o.get('vm_lo', 1), barpos - 2
            for i, (p, op) in enumerate(ops):
                g = lo + (i * (hi - lo)) // max(1, nv - 1) if nv > 1 else lo
                if TB == 4 and (g & 1) == 0 and g + 1 <= hi: g += 1
                if p and gaps[g]:
                    gaps[g] += p + ['s_nop 0']
                else:
                    gaps[g - 1] += p
                gaps[g].append(op)
            x, y = self.advance()
            gaps[barpos - 1] += x
            assert barpos + 1 <= nm - 1
            gaps[barpos + 1] += y
            x, y = self.rd_advance((u + 1) & 1)
            gaps[2] += x
            for i, v in enumerate(y): gaps[3 + i].append(v)
            for f in range(F):
                gf = u * F + f
                rd = [] if o.get('no_rd') else [self.read(gf + D, 0), self.read(gf + D, 1)]
                if not o.get('no_rd'):
                    pre[f * TB].append('s_waitcnt lgkmcnt(%d)' % (2 * (D - 1)))
                nb = 0
                if f == F - D:
                    b = ['s_waitcnt vmcnt(%d)' % ((self.PF - 1) * nv)]
                    if not o.get('no_bar'): b.append('s_barrier')
                    gaps[f * TB] = b + gaps[f * TB]
                    nb = len(b)
                if rd:
                    gaps[f * TB][nb:nb] = rd[:1]
                    gaps[f * TB + TB // 2][0:0] = rd[1:]
            if u == self.NX - 1:
                gaps[nm - 2] += ['s_sub_u32 s%d, s%d, 1' % (S_CNT, S_CNT)]
                gaps[nm - 1] += ['s_cmp_lg_u32 s%d, 0' % S_CNT, 's_cbranch_scc1 %s' % lab]
            j = 0
            for f in range(F):
                ks, cb = divmod(f, CB)
                w = self.wr((u * F + f) % self.RING)
                for tb in range(TB):
                    for x in pre[j]: a(x)
                    A, B = w(0, 4), self.xr(u, ks, tb)
                    if self.swap(cb): A, B = B, A
                    c = self.acc(tb, cb)
                    if not o.get('no_mfma'):
                        a('v_mfma_f32_16x16x32_bf16 %s, %s, %s, %s' % (c, A, B, c))
                    for x in gaps[j]: a(x)
                    j += 1
```

```python
from gemm import *

KVP_REC = 4224

def swz_src(a, vL, pitch, dst, t0, t1):
    a('v_lshrrev_b32 v%d, 3, v%d' % (t0, vL))
    a('v_mul_u32_u24 v%d, %d, v%d' % (dst, pitch, t0))
    a('v_lshrrev_b32 v%d, 3, v%d' % (t0, vL))
    a('v_and_b32 v%d, 6, v%d' % (t0, t0))
    a('v_and_b32 v%d, 7, v%d' % (t1, vL))
    a('v_xor_b32 v%d, v%d, v%d' % (t0, t0, t1))
    a('v_lshl_add_u32 v%d, v%d, 4, v%d' % (dst, t0, dst))

def swz_rd(a, vL, dst, t0, t1):
    a('v_lshrrev_b32 v%d, 2, v%d' % (t0, vL))
    a('v_lshlrev_b32 v%d, 7, v%d' % (t0, t0))
    a('v_and_b32 v%d, 3, v%d' % (t1, vL))
    a('v_lshl_add_u32 v%d, v%d, 3, v%d' % (t0, t1, t0))
    a('v_bfe_u32 v%d, v%d, 3, 2' % (t1, vL))
    a('v_lshl_add_u32 v%d, v%d, 5, v%d' % (dst, t1, t0))
    for u in range(1, 4):
        a('v_xor_b32 v%d, %d, v%d' % (dst + u, 32 * u, dst))

def phi(a, regs, tmp, sL, sE):
    n = len(regs)
    for i, r in enumerate(regs): a('v_pk_mul_f32 v[%d:%d], v[%d:%d], s[%d:%d]' % (tmp + 2 * i, tmp + 2 * i + 1, r, r + 1, sL, sL + 1))
    for i in range(2 * n): a('v_min_f32 v%d, 0, v%d' % (tmp + i, tmp + i))
    for i in range(2 * n): a('v_exp_f32 v%d, v%d' % (tmp + i, tmp + i))
    for r in regs:
        a('v_max_f32 v%d, 0, v%d' % (r, r)); a('v_max_f32 v%d, 0, v%d' % (r + 1, r + 1))
    for i, r in enumerate(regs): a('v_pk_add_f32 v[%d:%d], v[%d:%d], v[%d:%d]' % (r, r + 1, r, r + 1, tmp + 2 * i, tmp + 2 * i + 1))
    for r in regs: a('v_pk_add_f32 v[%d:%d], v[%d:%d], s[%d:%d]' % (r, r + 1, r, r + 1, sE, sE + 1))

A_SB = 24576
def a_lds(opt): return A_SB * opt.get('NS', 4) + 49152

def kern_a(a, name, kidx, stamp=False, opt=None):
    opt = opt or {}
    NS, PF = opt.get('NS', 4), opt.get('PF', 2)
    st = Stamps(stamp, kidx)
    kernel_begin(a, name)
    end = a.newlabel('Lend')
    a('s_cmp_ge_u32 s2, 256')
    a('s_cbranch_scc1 %s' % end)
    load_ptrs(a)
    st.take(a)
    S_RB, S_HP, S_T0, S_T1, S_WVO, S_PN = 25, 26, 27, 28, 29, 30
    vTID, vL, vX, vD, vRdB, vRd0, vRd1 = 96, 97, 98, 100, 108, 112, 116
    T = 120
    a('v_mov_b32 v%d, v0' % vTID)
    wave_id(a, 1)
    a('v_and_b32 v%d, 63, v0' % vL)
    a('v_lshlrev_b32 v%d, 4, v%d' % (vX, vL))
    a('''s_and_b32 s%d, s2, 1
    s_lshl_b32 s%d, s%d, 3
    s_bfe_u32 s%d, s2, 0x30003
    s_add_u32 s%d, s%d, s%d
    s_bfe_u32 s%d, s2, 0x20001
    s_lshl_b32 s%d, s%d, 2
    s_lshr_b32 s%d, s2, 6
    s_add_u32 s%d, s%d, s%d''' % (S_RB, S_RB, S_RB, S_T0, S_RB, S_RB, S_T0, S_HP, S_HP, S_HP, S_T0, S_HP, S_HP, S_T0))
    a('s_lshl_b32 s%d, s%d, 2' % (S_PN, S_RB))
    a('s_add_u32 s%d, s%d, s%d' % (S_PN, S_PN, S_WAVE))
    swz_src(a, vL, 6144, 2, 3, 4)
    a('s_mul_i32 s%d, s%d, %d' % (S_T0, S_WAVE, 16 * 6144))
    a('v_add_u32 v%d, s%d, v2' % (vD, S_T0))
    for i in range(1, 6):
        seg, j = divmod(i, 2)
        a('v_add_u32 v%d, %d, v%d' % (vD + i, seg * 2048 + j * 8 * 6144 - 1024 * (i & 3), vD))
    a('s_mul_i32 s%d, s%d, 6144' % (S_WVO, S_WAVE))
    a('s_waitcnt lgkmcnt(0)')
    a('s_lshl_b32 s%d, s%d, 7' % (S_T1, S_HP))
    a('s_add_u32 s%d, s%d, s%d' % (SRD_W, P_WQKV, S_T1))
    a('s_addc_u32 s%d, s%d, 0' % (SRD_W + 1, P_WQKV + 1))
    a('s_sub_u32 s%d, %d, s%d' % (SRD_W + 2, 1024 * 6144, S_T1))
    a('s_mov_b32 s%d, 0x20000' % (SRD_W + 3))
    a('s_lshl_b32 s%d, s%d, 16' % (S_T0, S_PN))
    srd_off(a, SRD_X0, P_WS, 's%d' % S_T0, 65536)
    accb = lambda tb, cb: 4 * (cb * 2 + tb) if cb >= 4 else 4 * (tb * 4 + cb)
    acc = lambda tb, cb: vr(accb(tb, cb), 4)
    xr = lambda slot, ks, tb: ar(16 * slot + 8 * ks + 4 * tb, 4)
    wr = lambda ring: Reg('a', 64 + 4 * ring)
    dma = [('v%d' % (vD + i), (0 if i == 0 else 4096 if i == 4 else None), 1024 * (i & 3)) for i in range(6)]
    g = Gemm(NP=1, CB=12, KS=2, NST=16, NS=NS, SB=A_SB, PF=PF, NX=4, D=opt.get('D', 6), RING=12,
             acc=acc, xr=xr, wr=wr, vX='v%d' % vX, vRdBase=['v%d' % (vRdB + u) for u in range(4)],
             vRd=[['v%d' % (vRd0 + u) for u in range(4)], ['v%d' % (vRd1 + u) for u in range(4)]],
             dma=dma, wpitch=6144,
             rdoff=lambda ks, cb, half: (cb & 3, (2 * ks + half) * 6144 + (cb >> 2) * 2048),
             swap=lambda cb: cb >= 4, wr_wave_off='s%d' % S_WVO, opt=opt)
    g.prologue_init(a)
    for s in range(PF): g.prologue_stage(a, s)
    swz_rd(a, vL, vRdB, 2, 3)
    for r in range(96): a('v_mov_b32 v%d, 0' % r)
    g.prologue_start(a, (PF - 1) * g.nv())
    st.take(a)
    g.loop(a)
    st.take(a)
    a('s_mov_b32 s60, 0x%x' % f2u(LOG2E)); a('s_mov_b32 s61, s60')
    a('s_mov_b32 s62, 0x%x' % f2u(1e-6)); a('s_mov_b32 s63, s62')
    ONE, KF, VF, KV = T + 16, T + 20, T + 36, 0
    for r in range(4): a('v_mov_b32 v%d, 0x3f803f80' % (ONE + r))
    a('s_nop 3')
    for cb in range(4, 8, 2):
        b = accb(0, cb)
        phi(a, [b + 2 * i for i in range(8)], T, 60, 62)
    for i in range(16): a('v_cvt_pk_bf16_f32 v%d, v%d, v%d' % (KF + i, 32 + 2 * i, 33 + 2 * i))
    for i in range(16): a('v_cvt_pk_bf16_f32 v%d, v%d, v%d' % (VF + i, 64 + 2 * i, 65 + 2 * i))
    a('s_nop 1')
    for h2 in range(2):
        for db in range(2):
            for eb in range(2):
                d = 32 + 4 * (h2 * 4 + db * 2 + eb)
                a('v_mfma_f32_16x16x32_bf16 v[%d:%d], %s, %s, 0' % (d, d + 3, vr(KF + 4 * (h2 * 2 + db), 4), vr(VF + 4 * (h2 * 2 + eb), 4)))
            d = 64 + 4 * (h2 * 2 + db)
            a('v_mfma_f32_16x16x32_bf16 v[%d:%d], %s, %s, 0' % (d, d + 3, vr(KF + 4 * (h2 * 2 + db), 4), vr(ONE, 4)))
    a('s_lshl_b32 s%d, s%d, 16' % (S_T0, S_PN))
    a('s_lshl_b32 s%d, s%d, 12' % (S_T1, S_HP))
    a('s_add_u32 s%d, s%d, s%d' % (S_T0, S_T0, S_T1))
    a('s_add_u32 s%d, s%d, %d' % (S_T0, S_T0, WS_PQ))
    srd_off(a, SRD_B, P_WS, 's%d' % S_T0, 4096)
    a('s_mul_i32 s%d, s%d, 12288' % (S_T0, S_WAVE))
    a('s_add_u32 s%d, s%d, %d' % (S_T0, S_T0, A_SB * NS))
    a('v_add_u32 v%d, s%d, v%d' % (vD, S_T0, vX))
    phi(a, [2 * i for i in range(8)], T, 60, 62)
    for i in range(12): a('ds_write_b128 v%d, v[%d:%d] offset:%d' % (vD, 32 + 4 * i, 35 + 4 * i, 1024 * i))
    for i in range(8): a('v_cvt_pk_bf16_f32 v%d, v%d, v%d' % (KF + i, 2 * i, 2 * i + 1))
    for h2 in range(2):
        a('buffer_store_dwordx4 %s, v%d, s[%d:%d], 0 offen offset:%d' % (vr(KF + 4 * h2, 4), vX, SRD_B, SRD_B + 3, 2048 * h2))
    a('s_waitcnt lgkmcnt(0)')
    a('s_barrier')
    a('s_lshl_b32 s%d, s%d, 11' % (S_T0, S_WAVE))
    a('s_add_u32 s%d, s%d, %d' % (S_T0, S_T0, A_SB * NS))
    a('v_add_u32 v%d, s%d, v%d' % (vD, S_T0, vX))
    a('s_lshl_b32 s%d, s%d, 10' % (S_T0, S_WAVE))
    a('s_add_u32 s%d, s%d, %d' % (S_T0, S_T0, A_SB * NS + 8192))
    a('v_add_u32 v%d, s%d, v%d' % (vD + 1, S_T0, vX))
    for w in range(4):
        a('ds_read_b128 v[%d:%d], v%d offset:%d' % (32 + 12 * w, 35 + 12 * w, vD, 12288 * w))
        a('ds_read_b128 v[%d:%d], v%d offset:%d' % (36 + 12 * w, 39 + 12 * w, vD, 12288 * w + 1024))
        a('ds_read_b128 v[%d:%d], v%d offset:%d' % (40 + 12 * w, 43 + 12 * w, vD + 1, 12288 * w))
    phi(a, [16 + 2 * i for i in range(8)], T, 60, 62)
    for i in range(8): a('v_cvt_pk_bf16_f32 v%d, v%d, v%d' % (VF + i, 16 + 2 * i, 17 + 2 * i))
    for h2 in range(2):
        a('buffer_store_dwordx4 %s, v%d, s[%d:%d], 0 offen offset:%d' % (vr(VF + 4 * h2, 4), vX, SRD_B, SRD_B + 3, 2048 * h2 + 1024))
    a('s_lshr_b32 s%d, s%d, 1' % (S_T0, S_WAVE))
    a('s_lshl_b32 s%d, s%d, 1' % (S_T1, S_HP))
    a('s_add_u32 s%d, s%d, s%d' % (S_T0, S_T0, S_T1))
    a('s_lshl_b32 s%d, s%d, 4' % (S_T0, S_T0))
    a('s_add_u32 s%d, s%d, s%d' % (S_T0, S_T0, S_RB))
    a('s_mul_i32 s%d, s%d, %d' % (S_T0, S_T0, KVP_REC))
    a('s_add_u32 s%d, s%d, %d' % (S_T0, S_T0, WS_KVP))
    srd_off(a, SRD_A, P_WS, 's%d' % S_T0, KVP_REC)
    a('s_and_b32 s%d, s%d, 1' % (S_T0, S_WAVE))
    a('s_lshl_b32 s%d, s%d, 6' % (S_T1, S_T0))
    a('s_add_u32 s%d, s%d, 4096' % (S_T1, S_T1))
    a('s_lshl_b32 s%d, s%d, 11' % (S_T0, S_T0))
    a('v_and_b32 v%d, 0x30, v%d' % (vD + 2, vL))
    a('s_waitcnt lgkmcnt(0)')
    for r in range(0, 12, 2):
        a('v_pk_add_f32 v[%d:%d], v[%d:%d], v[%d:%d]' % (32 + r, 33 + r, 32 + r, 33 + r, 44 + r, 45 + r))
        a('v_pk_add_f32 v[%d:%d], v[%d:%d], v[%d:%d]' % (56 + r, 57 + r, 56 + r, 57 + r, 68 + r, 69 + r))
    for r in range(0, 12, 2):
        a('v_pk_add_f32 v[%d:%d], v[%d:%d], v[%d:%d]' % (32 + r, 33 + r, 32 + r, 33 + r, 56 + r, 57 + r))
    a('buffer_store_dwordx4 v[32:35], v%d, s[%d:%d], s%d offen' % (vX, SRD_A, SRD_A + 3, S_T0))
    a('buffer_store_dwordx4 v[36:39], v%d, s[%d:%d], s%d offen offset:1024' % (vX, SRD_A, SRD_A + 3, S_T0))
    a('buffer_store_dwordx4 v[40:43], v%d, s[%d:%d], s%d offen' % (vD + 2, SRD_A, SRD_A + 3, S_T1))
    if stamp:
        st.take(a)
        a('s_waitcnt vmcnt(0)')
        st.take(a)
        st.flush(a, P_WS, 's2', 0, 'v%d' % vTID)
    a.label(end)
    a('s_endpgm')
    kernel_desc(a, name, 200 + 112, 102, 200)

CE_SB = 16384
def ce_lds(opt): return CE_SB * 4

def kern_ce(a, name, kidx, which, stamp=False, opt=None):
    opt = opt or {}
    isC = which == 'C'
    K = 1024 if isC else 3584
    PF = 2
    st = Stamps(stamp, kidx)
    kernel_begin(a, name)
    end = a.newlabel('Lend')
    a('s_cmp_ge_u32 s2, 256')
    a('s_cbranch_scc1 %s' % end)
    load_ptrs(a)
    st.take(a)
    S_RT, S_CT, S_T0, S_T1, S_WVO, S_PN = 25, 26, 27, 28, 29, 30
    vTID, vL, vX, vRow, vD, vRdB = 32, 33, 34, 35, 36, 40
    RES, T = 44, 64
    a('v_mov_b32 v%d, v0' % vTID)
    wave_id(a, 1)
    a('v_and_b32 v%d, 63, v0' % vL)
    a('v_lshlrev_b32 v%d, 4, v%d' % (vX, vL))
    a('''s_bfe_u32 s%d, s2, 0x20001
    s_lshl_b32 s%d, s%d, 2
    s_bfe_u32 s%d, s2, 0x20003
    s_add_u32 s%d, s%d, s%d
    s_and_b32 s%d, s2, 1
    s_lshl_b32 s%d, s%d, 3
    s_lshr_b32 s%d, s2, 5
    s_add_u32 s%d, s%d, s%d''' % (S_RT, S_RT, S_RT, S_T0, S_RT, S_RT, S_T0, S_CT, S_CT, S_CT, S_T0, S_CT, S_CT, S_T0))
    a('s_lshl_b32 s%d, s%d, 2' % (S_PN, S_RT))
    a('s_add_u32 s%d, s%d, s%d' % (S_PN, S_PN, S_WAVE))
    swz_src(a, vL, 2048, 2, 3, 4)
    a('s_lshl_b32 s%d, s%d, 16' % (S_T0, S_WAVE))
    a('v_add_u32 v%d, s%d, v2' % (vD, S_T0))
    for i in range(1, 4):
        a('v_add_u32 v%d, %d, v%d' % (vD + i, i * (8 * 2048 - 1024), vD))
    a('s_lshl_b32 s%d, s%d, 12' % (S_WVO, S_WAVE))
    a('s_waitcnt lgkmcnt(0)')
    PW = P_WO if isC else P_WD
    a('s_lshl_b32 s%d, s%d, 7' % (S_T1, S_CT))
    a('s_add_u32 s%d, s%d, s%d' % (SRD_W, PW, S_T1))
    a('s_addc_u32 s%d, s%d, 0' % (SRD_W + 1, PW + 1))
    a('s_sub_u32 s%d, %d, s%d' % (SRD_W + 2, K * 2048, S_T1))
    a('s_mov_b32 s%d, 0x20000' % (SRD_W + 3))
    a('s_mul_i32 s%d, s%d, %d' % (S_T0, S_PN, K * 64))
    a('s_add_u32 s%d, s%d, %d' % (S_T0, S_T0, WS_O if isC else WS_HH))
    srd_off(a, SRD_X0, P_WS, 's%d' % S_T0, K * 64)
    accb = lambda tb, cb: 4 * (tb * 4 + cb)
    acc = lambda tb, cb: vr(accb(tb, cb), 4)
    xr = lambda slot, ks, tb: ar(32 * slot + 8 * ks + 4 * tb, 4)
    wr = lambda ring: Reg('a', 128 + 4 * ring)
    dma = [('v%d' % (vD + i), (0 if i == 0 else None), 1024 * i) for i in range(4)]
    g = Gemm(NP=1, CB=4, KS=4, NST=K // 128, NS=4, SB=CE_SB, PF=PF, NX=4, D=opt.get('D', 4), RING=8,
             acc=acc, xr=xr, wr=wr, vX='v%d' % vX, vRdBase=['v%d' % (vRdB + u) for u in range(4)], vRd=None,
             dma=dma, wpitch=2048, rdoff=lambda ks, cb, half: (cb, ks * 4096 + half * 2048),
             wr_wave_off='s%d' % S_WVO, opt=opt)
    g.prologue_init(a)
    for s in range(PF): g.prologue_stage(a, s)
    a('s_lshl_b32 s%d, s%d, 16' % (S_T0, S_PN))
    a('s_lshl_b32 s58, s%d, 12' % S_CT)
    a('s_add_u32 s58, s58, s%d' % S_T0)
    a('s_add_u32 s58, s58, %d' % WS_H)
    a('s_add_u32 s59, s%d, s%d' % (S_T0, S_T1))
    srd_off(a, SRD_A, P_WS, 's58', 4096)
    srd_off(a, SRD_B, P_X if isC else P_OUT, 's59', 31 * 2048 + 128)
    nres = 0
    if isC:
        a('v_and_b32 v2, 15, v%d' % vL)
        a('v_lshlrev_b32 v2, 11, v2')
        a('v_lshrrev_b32 v3, 4, v%d' % vL)
        a('v_lshl_add_u32 v%d, v3, 3, v2' % vRow)
        a('s_mov_b32 s58, 32768')
        for tb in range(2):
            for cb in range(4):
                r = RES + 2 * (tb * 4 + cb)
                a('buffer_load_dwordx2 v[%d:%d], v%d, s[%d:%d], %s offen offset:%d' % (r, r + 1, vRow, SRD_B, SRD_B + 3, 's58' if tb else '0', 32 * cb))
        nres = 8
    else:
        for tb in range(2):
            for kk in range(2):
                r = RES + 4 * (tb * 2 + kk)
                a('buffer_load_dwordx4 v[%d:%d], v%d, s[%d:%d], 0 offen offset:%d' % (r, r + 3, vX, SRD_A, SRD_A + 3, kk * 2048 + tb * 1024))
        a('s_lshl_b32 s58, s%d, 7' % S_PN)
        a('s_add_u32 s58, s58, %d' % WS_RSTD)
        srd_off(a, SRD_X1, P_WS, 's58', 128)
        a('v_and_b32 v2, 15, v%d' % vL)
        a('v_lshlrev_b32 v3, 2, v2')
        a('buffer_load_dword v60, v3, s[%d:%d], 0 offen' % (SRD_X1, SRD_X1 + 3))
        a('buffer_load_dword v62, v3, s[%d:%d], 0 offen offset:64' % (SRD_X1, SRD_X1 + 3))
        a('v_lshlrev_b32 v2, 11, v2')
        a('v_bfe_u32 v4, v%d, 4, 1' % vL)
        a('v_lshl_add_u32 v2, v4, 5, v2')
        a('v_lshrrev_b32 v4, 5, v%d' % vL)
        a('v_lshl_add_u32 v%d, v4, 4, v2' % vRow)
        nres = 6
    swz_rd(a, vL, vRdB, 4, 5)
    for r in range(32): a('v_mov_b32 v%d, 0' % r)
    g.prologue_start(a, (PF - 1) * g.nv() + nres)
    st.take(a)
    g.loop(a)
    st.take(a)
    a('s_mov_b32 s60, 0xffff0000')
    a('s_nop 4')
    if isC:
        for i in range(16):
            a('v_lshlrev_b32 v%d, 16, v%d' % (T, RES + i))
            a('v_and_b32 v%d, s60, v%d' % (T + 1, RES + i))
            a('v_pk_add_f32 v[%d:%d], v[%d:%d], v[%d:%d]' % (2 * i, 2 * i + 1, 2 * i, 2 * i + 1, T, T + 1))
        for i in range(16): a('v_cvt_pk_bf16_f32 v%d, v%d, v%d' % (RES + i, 2 * i, 2 * i + 1))
        for tb in range(2):
            for kk in range(2):
                r = RES + 4 * (tb * 2 + kk)
                a('buffer_store_dwordx4 v[%d:%d], v%d, s[%d:%d], 0 offen offset:%d' % (r, r + 3, vX, SRD_A, SRD_A + 3, kk * 2048 + tb * 1024))
        for i in range(16):
            a('v_lshlrev_b32 v%d, 16, v%d' % (2 * i, RES + i))
            a('v_and_b32 v%d, s60, v%d' % (2 * i + 1, RES + i))
        for tb in range(2):
            s = T + 2 * tb
            a('v_pk_add_f32 v[%d:%d], v[%d:%d], v[%d:%d]' % (s, s + 1, 16 * tb, 16 * tb + 1, 16 * tb + 2, 16 * tb + 3))
            for i in range(2, 8): a('v_pk_add_f32 v[%d:%d], v[%d:%d], v[%d:%d]' % (s, s + 1, s, s + 1, 16 * tb + 2 * i, 16 * tb + 2 * i + 1))
        def allsum(regs):
            for r in regs: a('v_add_f32 v%d, v%d, v%d' % (r, r, r + 1))
            for sw in ('v_permlane16_swap_b32', 'v_permlane32_swap_b32'):
                for r in regs: a('v_mov_b32 v%d, v%d' % (r + 1, r))
                a('s_nop 1')
                for r in regs: a('%s v%d, v%d' % (sw, r, r + 1))
                for r in regs: a('v_add_f32 v%d, v%d, v%d' % (r, r, r + 1))
        allsum([T, T + 2])
        for tb in range(2):
            a('v_mul_f32 v%d, 0x%x, v%d' % (T + 4 + 2 * tb, f2u(-1.0 / 64), T + 2 * tb))
            a('v_mov_b32 v%d, v%d' % (T + 5 + 2 * tb, T + 4 + 2 * tb))
        for tb in range(2):
            for i in range(8):
                r = 16 * tb + 2 * i
                a('v_pk_add_f32 v[%d:%d], v[%d:%d], v[%d:%d]' % (r, r + 1, r, r + 1, T + 4 + 2 * tb, T + 5 + 2 * tb))
        for tb in range(2):
            s = T + 8 + 2 * tb
            a('v_pk_mul_f32 v[%d:%d], v[%d:%d], v[%d:%d]' % (s, s + 1, 16 * tb, 16 * tb + 1, 16 * tb, 16 * tb + 1))
            for i in range(1, 8):
                r = 16 * tb + 2 * i
                a('v_pk_fma_f32 v[%d:%d], v[%d:%d], v[%d:%d], v[%d:%d]' % (s, s + 1, r, r + 1, r, r + 1, s, s + 1))
        allsum([T + 8, T + 10])
        a('v_bfe_u32 v0, v%d, 4, 1' % vL)
        a('v_cmp_eq_u32 vcc, 1, v0')
        a('s_lshl_b32 s58, s%d, 14' % S_CT)
        a('s_lshl_b32 s59, s%d, 8' % S_PN)
        a('s_add_u32 s58, s58, s59')
        a('s_add_u32 s58, s58, %d' % WS_ST2)
        srd_off(a, SRD_B, P_WS, 's58', 256)
        a('v_cndmask_b32 v2, v%d, v%d, vcc' % (T, T + 2))
        a('v_cndmask_b32 v3, v%d, v%d, vcc' % (T + 8, T + 10))
        a('v_lshlrev_b32 v0, 3, v%d' % vL)
        a('buffer_store_dwordx2 v[2:3], v0, s[%d:%d], 0 offen' % (SRD_B, SRD_B + 3))
    else:
        a('v_mov_b32 v61, v60')
        a('v_mov_b32 v63, v62')
        a('s_mov_b32 s58, 32768')
        for tb in range(2):
            for i in range(8 * tb, 8 * tb + 8):
                a('v_lshlrev_b32 v%d, 16, v%d' % (T, RES + i))
                a('v_and_b32 v%d, s60, v%d' % (T + 1, RES + i))
                a('v_pk_fma_f32 v[%d:%d], v[%d:%d], v[%d:%d], v[%d:%d]' % (2 * i, 2 * i + 1, 2 * i, 2 * i + 1, 60 + 2 * tb, 61 + 2 * tb, T, T + 1))
            for i in range(8 * tb, 8 * tb + 8): a('v_cvt_pk_bf16_f32 v%d, v%d, v%d' % (RES + i, 2 * i, 2 * i + 1))
            a('s_nop 1')
            for kk in range(2):
                r = RES + 8 * tb + 4 * kk
                a('v_permlane16_swap_b32 v%d, v%d' % (r, r + 2))
                a('v_permlane16_swap_b32 v%d, v%d' % (r + 1, r + 3))
            for kk in range(2):
                r = RES + 8 * tb + 4 * kk
                a('buffer_store_dwordx4 v[%d:%d], v%d, s[%d:%d], %s offen offset:%d' % (r, r + 3, vRow, SRD_B, SRD_B + 3, 's58' if tb else '0', 64 * kk))
    if stamp:
        st.take(a)
        a('s_waitcnt vmcnt(0)')
        st.take(a)
        st.flush(a, P_WS, 's2', 0, 'v%d' % vTID)
    a.label(end)
    a('s_endpgm')
    kernel_desc(a, name, 80 + 160, 102, 80)
```

```python
from gemm import *

D_SB = 28672

def d_lds(opt):
    return D_SB * opt.get('NS', 5) + 4 * 2048

def kern_d(a, name, kidx, stamp=False, opt=None):
    opt = opt or {}
    NS, PF = opt.get('NS', 5), opt.get('PF', 3)
    st = Stamps(stamp, kidx)
    kernel_begin(a, name)
    end = a.newlabel('Lend')
    a('s_cmp_ge_u32 s2, 256')
    a('s_cbranch_scc1 %s' % end)
    load_ptrs(a)
    st.take(a)
    S_RB, S_FT, S_T0, S_T1, S_WVO, S_PN, S_ODD = 25, 26, 27, 28, 29, 30, 31
    vTID, vL, vX, vRdB, vRd0, vRd1, vD = 224, 225, 226, 227, 228, 229, 230
    vA = 238
    T = 246
    a('v_mov_b32 v%d, v0' % vTID)
    wave_id(a, 1)
    a('v_and_b32 v%d, 63, v0' % vL)
    a('v_lshlrev_b32 v%d, 4, v%d' % (vX, vL))
    a('''s_and_b32 s%d, s2, 1
    s_lshl_b32 s%d, s%d, 2
    s_bfe_u32 s%d, s2, 0x20003
    s_add_u32 s%d, s%d, s%d
    s_bfe_u32 s%d, s2, 0x20001
    s_lshl_b32 s%d, s%d, 3
    s_lshr_b32 s%d, s2, 5
    s_add_u32 s%d, s%d, s%d''' % (S_RB, S_RB, S_RB, S_T0, S_RB, S_RB, S_T0, S_FT, S_FT, S_FT, S_T0, S_FT, S_FT, S_T0))
    a('s_and_b32 s%d, s%d, 1' % (S_ODD, S_FT))
    a('s_lshl_b32 s%d, s%d, 3' % (S_PN, S_RB))
    a('s_lshl_b32 s%d, s%d, 1' % (S_T0, S_WAVE))
    a('s_add_u32 s%d, s%d, s%d' % (S_PN, S_PN, S_T0))
    a('s_lshl_b32 s%d, s%d, 8' % (S_T0, S_PN))
    a('v_lshl_add_u32 v1, v%d, 3, s%d' % (vL, S_T0))
    a('s_lshl_b32 s58, s%d, 2' % S_ODD)
    for i in range(2):
        a('v_add_u32 v2, %d, v%d' % (64 * i, vL))
        a('v_mul_u32_u24 v3, 2341, v2')
        a('v_lshrrev_b32 v3, 16, v3')
        a('v_mul_u32_u24 v4, 28, v3')
        a('v_sub_u32 v2, v2, v4')
        a('v_add_u32 v2, s58, v2')
        a('v_subrev_u32 v4, 28, v2')
        a('v_min_u32 v2, v2, v4')
        a('v_mul_u32_u24 v3, %d, v3' % (3584 * 4))
        a('v_lshl_add_u32 v%d, v2, 4, v3' % (6 + i))
    a('v_subrev_u32 v7, 1024, v7')
    a('s_waitcnt lgkmcnt(0)')
    srd_off(a, SRD_A, P_WS, WS_ST2, 3 << 20)
    for ct in range(16):
        a('s_mov_b32 s%d, %d' % (S_T1, ct * 16384))
        a('buffer_load_dwordx2 v[%d:%d], v1, s[%d:%d], s%d offen' % (16 + 2 * ct, 17 + 2 * ct, SRD_A, SRD_A + 3, S_T1))
    a('s_lshl_b32 s59, s%d, 11' % S_WAVE)
    a('s_add_u32 s59, s59, %d' % (D_SB * NS))
    a('s_mov_b32 m0, s59')
    a('s_mul_i32 s%d, s%d, 448' % (S_T1, S_FT))
    a('s_add_u32 s%d, s%d, %d' % (S_T1, S_T1, WS_CS - WS_ST2))
    a('buffer_load_dwordx4 v6, s[%d:%d], s%d offen lds' % (SRD_A, SRD_A + 3, S_T1))
    a('buffer_load_dwordx4 v7, s[%d:%d], s%d offen offset:1024 lds' % (SRD_A, SRD_A + 3, S_T1))
    a('s_and_b32 s%d, s%d, 1' % (S_T0, S_WAVE))
    a('s_mul_i32 s%d, s%d, %d' % (S_T1, S_T0, 32 * 7168))
    a('s_lshl_b32 s58, s%d, 1' % S_ODD)
    for i in range(7):
        a('v_add_u32 v2, %d, v%d' % (64 * i, vL))
        a('v_mul_u32_u24 v3, 4682, v2')
        a('v_lshrrev_b32 v3, 16, v3')
        a('v_mul_u32_u24 v4, 14, v3')
        a('v_sub_u32 v2, v2, v4')
        a('v_add_u32 v2, s58, v2')
        a('v_subrev_u32 v4, 14, v2')
        a('v_min_u32 v2, v2, v4')
        a('v_mul_u32_u24 v3, 7168, v3')
        a('v_lshl_add_u32 v3, v2, 4, v3')
        if i & 3:
            a('v_subrev_u32 v3, %d, v3' % (1024 * (i & 3)))
        a('v_add_u32 v%d, s%d, v3' % (vD + i, S_T1))
    a('s_mul_i32 s%d, s%d, 7168' % (S_WVO, S_WAVE))
    a('s_cmp_lt_u32 s%d, 2' % S_WAVE)
    a('s_cselect_b32 s60, s%d, s%d' % (P_WG, P_WU))
    a('s_cselect_b32 s61, s%d, s%d' % (P_WG + 1, P_WU + 1))
    a('s_mul_i32 s%d, s%d, 224' % (S_T1, S_FT))
    a('s_add_u32 s%d, s60, s%d' % (SRD_W, S_T1))
    a('s_addc_u32 s%d, s61, 0' % (SRD_W + 1))
    a('s_sub_u32 s%d, %d, s%d' % (SRD_W + 2, 1024 * 7168, S_T1))
    a('s_mov_b32 s%d, 0x20000' % (SRD_W + 3))
    a('s_lshl_b32 s%d, s%d, 16' % (S_T0, S_PN))
    a('s_add_u32 s%d, s%d, %d' % (S_T0, S_T0, WS_H))
    srd_off(a, SRD_X0, P_WS, 's%d' % S_T0, 65536)
    a('s_add_u32 s%d, s%d, 65536' % (S_T0, S_T0))
    srd_off(a, SRD_X1, P_WS, 's%d' % S_T0, 65536)

    accb = lambda tb, cb: 4 * (tb * 14 + cb)
    acc = lambda tb, cb: vr(accb(tb, cb), 4)
    xr = lambda slot, ks, tb: ar(32 * slot + 16 * ks + 4 * tb, 4)
    wr = lambda ring: Reg('a', 128 + 4 * ring)
    dma = [('v%d' % (vD + i), (0 if i == 0 else 4096 if i == 4 else None), 1024 * (i & 3)) for i in range(7)]
    g = Gemm(NP=2, CB=14, KS=2, NST=16, NS=NS, SB=D_SB, PF=PF, NX=4, D=opt.get('D', 4), RING=7,
             acc=acc, xr=xr, wr=wr, vX='v%d' % vX, vRdBase=['v%d' % vRdB], vRd=[['v%d' % vRd0], ['v%d' % vRd1]],
             dma=dma, wpitch=7168,
             rdoff=lambda ks, cb, half: (0, (cb // 7) * 14336 + (ks * 32 + half * 16) * 224 + (cb % 7) * 32),
             wr_wave_off='s%d' % S_WVO, opt=opt)
    g.prologue_init(a)
    g.prologue_stage(a, 0)
    a('''v_lshrrev_b32 v2, 2, v%d
    v_mul_u32_u24 v2, 224, v2
    v_and_b32 v3, 3, v%d
    v_lshl_add_u32 v%d, v3, 3, v2''' % (vL, vL, vRdB))
    a('s_waitcnt vmcnt(%d)' % g.nv())
    a('v_lshrrev_b32 v8, 4, v%d' % vL)
    a('v_lshl_add_u32 v8, v8, 4, s59')
    for cb in range(14):
        a('ds_read_b128 %s, v8 offset:%d' % (acc(3, cb), (cb // 7) * 448 + (cb % 7) * 64))
        a('ds_read_b128 %s, v8 offset:%d' % (acc(2, cb), 896 + (cb // 7) * 448 + (cb % 7) * 64))
    a('v_add_f32 v1, v16, v18')
    for ct in range(2, 16): a('v_add_f32 v1, v1, v%d' % (16 + 2 * ct))
    a('v_mul_f32 v1, 0x%x, v1' % f2u(-1.0 / 1024))
    a('v_add_f32 v2, v17, v19')
    for ct in range(2, 16): a('v_add_f32 v2, v2, v%d' % (17 + 2 * ct))
    a('v_mov_b32 v3, 0')
    a('s_mov_b32 s%d, 0x%x' % (S_T0, f2u(1.0 / 64)))
    for ct in range(16):
        a('v_fma_f32 v4, v%d, s%d, v1' % (16 + 2 * ct, S_T0))
        a('v_fmac_f32 v3, v4, v4')
    a('v_fmac_f32 v2, 0x%x, v3' % f2u(64.0))
    a('v_mov_b32 v3, 0x%x' % f2u(1e-5))
    a('v_fmac_f32 v3, 0x%x, v2' % f2u(1.0 / 1024))
    a('v_rsq_f32 v3, v3')
    a('v_and_b32 v4, 15, v%d' % vL)
    a('v_lshlrev_b32 v4, 2, v4')
    a('v_mul_f32 v2, 0x%x, v3' % f2u(-LOG2E))
    for tb in range(4):
        a('ds_bpermute_b32 v%d, v4, v1 offset:%d' % (T + 2 * tb, 64 * tb))
        a('ds_bpermute_b32 v%d, v4, v2 offset:%d' % (vA + 2 * tb, 64 * tb))
    l = a.newlabel('Lnors')
    a('s_cmp_lg_u32 s%d, 0' % S_FT)
    a('s_cbranch_scc1 %s' % l)
    a('s_lshl_b32 s%d, s%d, 7' % (S_T0, S_PN))
    a('s_add_u32 s%d, s%d, %d' % (S_T0, S_T0, WS_RSTD - WS_ST2))
    a('v_lshlrev_b32 v5, 2, v%d' % vL)
    a('buffer_store_dword v3, v5, s[%d:%d], s%d offen' % (SRD_A, SRD_A + 3, S_T0))
    a.label(l)
    for s in range(1, PF): g.prologue_stage(a, s)
    a('s_waitcnt lgkmcnt(0)')
    for tb in range(4):
        a('v_mov_b32 v%d, v%d' % (T + 2 * tb + 1, T + 2 * tb))
        a('v_mov_b32 v%d, v%d' % (vA + 2 * tb + 1, vA + 2 * tb))
    for r in range(0, 56, 2):
        b = accb(3, 0) + r
        a('v_pk_add_f32 v[%d:%d], v[%d:%d], v[%d:%d]' % (b, b + 1, b, b + 1, b - 56, b - 55))
    for tb in range(4):
        for r in range(0, 56, 2):
            b = accb(3, 0) + r; d = accb(tb, 0) + r
            a('v_pk_mul_f32 v[%d:%d], v[%d:%d], v[%d:%d]' % (d, d + 1, b, b + 1, T + 2 * tb, T + 2 * tb + 1))
    g.prologue_start(a, (PF - 1) * g.nv())
    st.take(a)
    g.loop(a)
    st.take(a)
    a('s_mul_i32 s%d, s%d, %d' % (S_T0, S_PN, 224 * 1024))
    a('s_add_u32 s%d, s%d, %d' % (S_T0, S_T0, WS_HH))
    srd_off(a, SRD_B, P_WS, 's%d' % S_T0, 2 * 224 * 1024)
    a('s_mul_i32 s58, s%d, 7' % S_FT)
    a('s_add_u32 s58, s58, s%d' % S_ODD)
    a('s_lshl_b32 s58, s58, 10')
    a('s_mul_i32 s59, s%d, %d' % (S_ODD, 8 * 1024 - 8))
    a('s_sub_u32 s59, s58, s59')
    a('s_add_u32 s59, s59, %d' % (6 * 1024))
    a('s_mov_b32 s60, 1.0')
    a('s_mov_b32 s61, 1.0')
    for tb in range(4):
        p, t = divmod(tb, 2)
        for pr in range(4):
            n = 8 if pr < 3 else 4
            b = accb(tb, 2 * pr); u = accb(tb, 7 + 2 * pr)
            for r in range(0, n, 2): a('v_pk_mul_f32 v[%d:%d], v[%d:%d], v[%d:%d]' % (b + r, b + r + 1, b + r, b + r + 1, vA + 2 * tb, vA + 2 * tb + 1))
            for r in range(n): a('v_exp_f32 v%d, v%d' % (b + r, b + r))
            for r in range(0, n, 2): a('v_pk_add_f32 v[%d:%d], v[%d:%d], s[60:61]' % (b + r, b + r + 1, b + r, b + r + 1))
            for r in range(n): a('v_rcp_f32 v%d, v%d' % (b + r, b + r))
            for r in range(0, n, 2): a('v_pk_mul_f32 v[%d:%d], v[%d:%d], v[%d:%d]' % (b + r, b + r + 1, b + r, b + r + 1, u + r, u + r + 1))
            for r in range(n // 2): a('v_cvt_pk_bf16_f32 v%d, v%d, v%d' % (u + r, b + 2 * r, b + 2 * r + 1))
            if pr < 3:
                a('s_add_u32 s%d, s58, %d' % (S_T1, p * 224 * 1024 + pr * 2048))
                a('buffer_store_dwordx4 v[%d:%d], v%d, s[%d:%d], s%d offen offset:%d' % (u, u + 3, vX, SRD_B, SRD_B + 3, S_T1, 1024 * t))
            else:
                a('s_add_u32 s%d, s59, %d' % (S_T1, p * 224 * 1024))
                a('buffer_store_dwordx2 v[%d:%d], v%d, s[%d:%d], s%d offen offset:%d' % (u, u + 1, vX, SRD_B, SRD_B + 3, S_T1, 1024 * t))
    if stamp:
        st.take(a)
        a('s_waitcnt vmcnt(0)')
        st.take(a)
        st.flush(a, P_WS, 's2', 0, 'v%d' % vTID)
    a.label(end)
    a('s_endpgm')
    kernel_desc(a, name, 256 + 160, 102, 256)
```

```python
from gemm import *
from kern_ace import KVP_REC

def wave_allsum(a, regs, tmp):
    for ror in (8, 4, 2, 1):
        a('s_nop 1')
        for r in regs: a('v_add_f32_dpp v%d, v%d, v%d row_ror:%d row_mask:0xf bank_mask:0xf' % (r, r, r, ror))
    for sw in ('v_permlane16_swap_b32', 'v_permlane32_swap_b32'):
        for i, r in enumerate(regs): a('v_mov_b32 v%d, v%d' % (tmp + i, r))
        a('s_nop 1')
        for i, r in enumerate(regs): a('%s v%d, v%d' % (sw, r, tmp + i))
        for i, r in enumerate(regs): a('v_add_f32 v%d, v%d, v%d' % (r, r, tmp + i))

def kern_k0(a, name, kidx, stamp=False, opt=None):
    opt = opt or {}
    st = Stamps(stamp, kidx)
    kernel_begin(a, name)
    end = a.newlabel('Lend'); lcs = a.newlabel('Lcs'); fin = a.newlabel('Lfin')
    a('s_cmp_ge_u32 s2, 480')
    a('s_cbranch_scc1 %s' % end)
    load_ptrs(a)
    st.take(a)
    vL = 1
    wave_id(a, 1)
    a('v_and_b32 v1, 63, v0')
    a('s_mov_b32 s60, 0xffff0000')
    a('s_cmp_ge_u32 s2, 256')
    a('s_cbranch_scc1 %s' % lcs)
    a('v_lshrrev_b32 v2, 1, v1')
    a('v_lshlrev_b32 v2, 6, v2')
    a('v_and_b32 v3, 1, v1')
    a('v_lshl_add_u32 v2, v3, 4, v2')
    a('s_lshl_b32 s25, s2, 14')
    a('s_lshl_b32 s26, s%d, 12' % S_WAVE)
    a('s_add_u32 s25, s25, s26')
    a('s_waitcnt lgkmcnt(0)')
    srd_off(a, SRD_A, P_X, 's25', 4096)
    for r in range(2):
        for j in range(2):
            d = 8 + 8 * r + 4 * j
            a('buffer_load_dwordx4 v[%d:%d], v2, s[%d:%d], 0 offen offset:%d' % (d, d + 3, SRD_A, SRD_A + 3, 2048 * r + 32 * j))
    a('s_lshr_b32 s25, s2, 2')
    a('s_lshl_b32 s25, s25, 16')
    a('s_bfe_u32 s26, s2, 0x10001')
    a('s_lshl_b32 s26, s26, 10')
    a('s_add_u32 s25, s25, s26')
    a('s_and_b32 s26, s2, 1')
    a('s_lshl_b32 s26, s26, 7')
    a('s_add_u32 s25, s25, s26')
    srd_off(a, SRD_B, P_WS, 's25', 31 * 2048 + 3 * 256 + 128)
    a('s_lshl_b32 s26, s%d, 1' % S_WAVE)
    a('v_and_b32 v3, 7, v1')
    a('v_xor_b32 v3, s26, v3')
    a('v_lshlrev_b32 v3, 4, v3')
    a('v_lshl_add_u32 v4, v1, 8, v3')
    a('v_xor_b32 v5, 16, v4')
    a('v_lshlrev_b32 v6, 4, v0')
    a('v_bfe_u32 v3, v0, 4, 3')
    a('v_xor_b32 v3, v3, v0')
    a('v_and_b32 v3, 7, v3')
    a('v_lshlrev_b32 v3, 4, v3')
    a('v_bfe_u32 v7, v0, 3, 2')
    a('v_lshl_add_u32 v3, v7, 8, v3')
    a('v_lshrrev_b32 v7, 5, v0')
    a('v_lshl_add_u32 v7, v7, 11, v3')
    a('s_waitcnt vmcnt(0)')
    for i in range(16):
        a('v_lshlrev_b32 v%d, 16, v%d' % (32 + 2 * i, 8 + i))
        a('v_and_b32 v%d, s60, v%d' % (33 + 2 * i, 8 + i))
    for r in range(2):
        s = 24 + 2 * r; b = 32 + 16 * r
        a('v_pk_add_f32 v[%d:%d], v[%d:%d], v[%d:%d]' % (s, s + 1, b, b + 1, b + 2, b + 3))
        for i in range(2, 8): a('v_pk_add_f32 v[%d:%d], v[%d:%d], v[%d:%d]' % (s, s + 1, s, s + 1, b + 2 * i, b + 2 * i + 1))
        a('v_add_f32 v%d, v%d, v%d' % (s, s, s + 1))
    wave_allsum(a, [24, 26], 28)
    for r in range(2):
        s = 24 + 2 * r; b = 32 + 16 * r
        a('v_mul_f32 v%d, 0x%x, v%d' % (s, f2u(-1.0 / 1024), s))
        a('v_mov_b32 v%d, v%d' % (s + 1, s))
        for i in range(8): a('v_pk_add_f32 v[%d:%d], v[%d:%d], v[%d:%d]' % (b + 2 * i, b + 2 * i + 1, b + 2 * i, b + 2 * i + 1, s, s + 1))
        a('v_pk_mul_f32 v[%d:%d], v[%d:%d], v[%d:%d]' % (s, s + 1, b, b + 1, b, b + 1))
        for i in range(1, 8): a('v_pk_fma_f32 v[%d:%d], v[%d:%d], v[%d:%d], v[%d:%d]' % (s, s + 1, b + 2 * i, b + 2 * i + 1, b + 2 * i, b + 2 * i + 1, s, s + 1))
        a('v_add_f32 v%d, v%d, v%d' % (s, s, s + 1))
    wave_allsum(a, [24, 26], 28)
    for r in range(2):
        s = 24 + 2 * r
        a('v_mov_b32 v%d, 0x%x' % (s + 1, f2u(1e-5)))
        a('v_fmac_f32 v%d, 0x%x, v%d' % (s + 1, f2u(1.0 / 1024), s))
        a('v_rsq_f32 v%d, v%d' % (s, s + 1))
    a('s_nop 0')
    for r in range(2):
        s = 24 + 2 * r; b = 32 + 16 * r
        a('v_mov_b32 v%d, v%d' % (s + 1, s))
        for i in range(8): a('v_pk_mul_f32 v[%d:%d], v[%d:%d], v[%d:%d]' % (b + 2 * i, b + 2 * i + 1, b + 2 * i, b + 2 * i + 1, s, s + 1))
        for e in range(2):
            for j in range(2):
                for q in range(2):
                    src = b + 8 * j + 4 * e + 2 * q
                    a('v_cvt_pk_bf16_f32 v%d, v%d, v%d' % (8 + 8 * r + 4 * e + 2 * j + q, src, src + 1))
        for e in range(2):
            d = 8 + 8 * r + 4 * e
            a('ds_write_b128 v%d, v[%d:%d] offset:%d' % (4 + r, d, d + 3, 128 * e))
    a('s_waitcnt lgkmcnt(0)')
    a('s_barrier')
    for i in range(4): a('ds_read_b128 v[%d:%d], v6 offset:%d' % (32 + 4 * i, 35 + 4 * i, 4096 * i))
    for i in range(4):
        a('s_mov_b32 s26, %d' % (16384 * i))
        a('s_waitcnt lgkmcnt(%d)' % (3 - i))
        a('buffer_store_dwordx4 v[%d:%d], v7, s[%d:%d], s26 offen' % (32 + 4 * i, 35 + 4 * i, SRD_B, SRD_B + 3))
    a('s_branch %s' % fin)
    a.label(lcs)
    a('s_sub_u32 s25, s2, 256')
    a('s_cmp_ge_u32 s25, 112')
    a('s_cselect_b32 s26, 1, 0')
    a('s_mul_i32 s27, s26, 112')
    a('s_sub_u32 s25, s25, s27')
    a('s_waitcnt lgkmcnt(0)')
    a('s_cmp_ge_u32 s25, 56')
    a('s_cselect_b32 s58, s%d, s%d' % (P_WU, P_WG))
    a('s_cselect_b32 s59, s%d, s%d' % (P_WU + 1, P_WG + 1))
    a('s_cselect_b32 s27, 56, 0')
    a('s_sub_u32 s27, s25, s27')
    srd(a, SRD_A, 's58', 's59', 1024 * 7168)
    a('s_lshl_b32 s28, s26, 2')
    a('s_add_u32 s28, s28, s%d' % S_WAVE)
    a('s_mul_i32 s28, s28, %d' % (128 * 7168))
    a('s_lshl_b32 s29, s27, 7')
    a('s_add_u32 s28, s28, s29')
    a('v_lshrrev_b32 v2, 3, v1')
    a('v_mul_u32_u24 v2, 7168, v2')
    a('v_and_b32 v3, 7, v1')
    a('v_lshl_add_u32 v2, v3, 4, v2')
    for i in range(16):
        a('buffer_load_dwordx4 v[%d:%d], v2, s[%d:%d], s28 offen' % (16 + 4 * i, 19 + 4 * i, SRD_A, SRD_A + 3))
        a('s_add_u32 s28, s28, %d' % (8 * 7168))
    for i in range(8): a('v_mov_b32 v%d, 0' % (8 + i))
    for i in range(16):
        a('s_waitcnt vmcnt(%d)' % (15 - i))
        for q in range(4):
            a('v_lshlrev_b32 v4, 16, v%d' % (16 + 4 * i + q))
            a('v_and_b32 v5, s60, v%d' % (16 + 4 * i + q))
            a('v_pk_add_f32 v[%d:%d], v[%d:%d], v[4:5]' % (8 + 2 * q, 9 + 2 * q, 8 + 2 * q, 9 + 2 * q))
    a('v_lshlrev_b32 v2, 5, v0')
    a('ds_write_b128 v2, v[8:11]')
    a('ds_write_b128 v2, v[12:15] offset:16')
    a('s_waitcnt lgkmcnt(0)')
    a('s_barrier')
    a('s_cmp_lg_u32 s%d, 0' % S_WAVE)
    a('s_cbranch_scc1 %s' % fin)
    a('v_lshlrev_b32 v2, 2, v1')
    for i in range(32): a('ds_read_b32 v%d, v2 offset:%d' % (16 + i, 256 * i))
    a('s_mul_i32 s28, s26, %d' % (7168 * 4))
    a('s_lshl_b32 s29, s25, 8')
    a('s_add_u32 s28, s28, s29')
    a('s_add_u32 s28, s28, %d' % WS_CS)
    srd_off(a, SRD_B, P_WS, 's28', 256)
    a('s_waitcnt lgkmcnt(0)')
    for i in range(1, 16): a('v_pk_add_f32 v[16:17], v[16:17], v[%d:%d]' % (16 + 2 * i, 17 + 2 * i))
    a('v_add_f32 v16, v16, v17')
    a('buffer_store_dword v16, v2, s[%d:%d], 0 offen' % (SRD_B, SRD_B + 3))
    a.label(fin)
    if stamp:
        a('s_waitcnt vmcnt(0)')
        for _ in range(4): st.take(a)
        st.flush(a, P_WS, 's2', 2, 'v0')
    a.label(end)
    a('s_endpgm')
    kernel_desc(a, name, 80, 102, 80)

def kern_b(a, name, kidx, stamp=False, opt=None):
    opt = opt or {}
    st = Stamps(stamp, kidx)
    kernel_begin(a, name)
    end = a.newlabel('Lend')
    a('s_cmp_ge_u32 s2, 256')
    a('s_cbranch_scc1 %s' % end)
    load_ptrs(a)
    st.take(a)
    wave_id(a, 1)
    a('v_and_b32 v1, 63, v0')
    a('v_lshlrev_b32 v2, 4, v0')
    a('v_lshlrev_b32 v3, 4, v1')
    a('s_and_b32 s25, s2, 7')
    a('s_lshl_b32 s25, s25, 2')
    a('s_lshr_b32 s26, s2, 6')
    a('s_add_u32 s25, s25, s26')
    a('s_bfe_u32 s26, s2, 0x30003')
    a('s_mul_i32 s27, s25, %d' % (16 * KVP_REC))
    a('s_add_u32 s27, s27, %d' % WS_KVP)
    a('s_lshl_b32 s28, s26, 3')
    a('s_lshl_b32 s29, s%d, 1' % S_WAVE)
    a('s_add_u32 s28, s28, s29')
    a('s_lshl_b32 s28, s28, 16')
    a('s_lshl_b32 s29, s25, 11')
    a('s_add_u32 s28, s28, s29')
    a('s_add_u32 s29, s28, %d' % WS_PQ)
    a('s_add_u32 s28, s28, %d' % WS_O)
    a('v_lshrrev_b32 v4, 3, v1')
    a('v_mul_u32_u24 v4, %d, v4' % KVP_REC)
    a('v_and_b32 v5, 7, v1')
    a('v_lshl_add_u32 v4, v5, 4, v4')
    a('s_waitcnt lgkmcnt(0)')
    srd_off(a, SRD_A, P_WS, 's27', 16 * KVP_REC)
    srd_off(a, SRD_X0, P_WS, 's29', 65536 + 2048)
    srd_off(a, SRD_B, P_WS, 's28', 65536 + 2048)
    for p in range(16):
        a('s_mov_b32 s30, %d' % (p * KVP_REC))
        a('buffer_load_dwordx4 v[%d:%d], v2, s[%d:%d], s30 offen' % (16 + 4 * p, 19 + 4 * p, SRD_A, SRD_A + 3))
    a('s_mov_b32 s30, 4096')
    a('buffer_load_dwordx4 v[8:11], v4, s[%d:%d], s30 offen' % (SRD_A, SRD_A + 3))
    a('s_mov_b32 s30, %d' % (4096 + 8 * KVP_REC))
    a('buffer_load_dwordx4 v[12:15], v4, s[%d:%d], s30 offen' % (SRD_A, SRD_A + 3))
    a('s_mov_b32 s30, 65536')
    for tb in range(4):
        a('buffer_load_dwordx4 v[%d:%d], v3, s[%d:%d], %s offen offset:%d' % (80 + 4 * tb, 83 + 4 * tb, SRD_X0, SRD_X0 + 3, 's30' if tb >> 1 else '0', 1024 * (tb & 1)))
    a('s_and_b32 s31, s%d, 1' % S_WAVE)
    a('s_lshl_b32 s31, s31, 10')
    a('s_lshr_b32 s58, s%d, 1' % S_WAVE)
    a('s_lshl_b32 s58, s58, 3')
    a('s_add_u32 s31, s31, s58')
    a('v_add_u32 v6, s31, v3')
    a('v_and_b32 v7, 3, v1')
    a('v_lshlrev_b32 v7, 4, v7')
    a('v_bfe_u32 v5, v1, 2, 1')
    a('v_lshl_add_u32 v7, v5, 3, v7')
    for p in range(1, 16):
        a('s_waitcnt vmcnt(%d)' % (21 - p))
        a('v_pk_add_f32 v[16:17], v[16:17], v[%d:%d]' % (16 + 4 * p, 17 + 4 * p))
        a('v_pk_add_f32 v[18:19], v[18:19], v[%d:%d]' % (18 + 4 * p, 19 + 4 * p))
    a('v_cvt_pk_bf16_f32 v16, v16, v17')
    a('v_cvt_pk_bf16_f32 v17, v18, v19')
    a('ds_write_b64 v6, v[16:17]')
    a('s_waitcnt vmcnt(4)')
    a('v_pk_add_f32 v[8:9], v[8:9], v[12:13]')
    a('v_pk_add_f32 v[10:11], v[10:11], v[14:15]')
    a('s_nop 1')
    for r in range(8, 12): a('v_add_f32_dpp v%d, v%d, v%d row_ror:8 row_mask:0xf bank_mask:0xf' % (r, r, r))
    for sw in ('v_permlane16_swap_b32', 'v_permlane32_swap_b32'):
        for r in range(4): a('v_mov_b32 v%d, v%d' % (12 + r, 8 + r))
        a('s_nop 1')
        for r in range(4): a('%s v%d, v%d' % (sw, 8 + r, 12 + r))
        for r in range(4): a('v_add_f32 v%d, v%d, v%d' % (8 + r, 8 + r, 12 + r))
    a('v_cvt_pk_bf16_f32 v8, v8, v9')
    a('v_cvt_pk_bf16_f32 v9, v10, v11')
    a('ds_write_b64 v7, v[8:9] offset:2048')
    a('v_and_b32 v5, 0x30, v1')
    a('s_waitcnt lgkmcnt(0)')
    a('s_barrier')
    a('ds_read_b128 v[16:19], v3')
    a('ds_read_b128 v[20:23], v3 offset:1024')
    a('ds_read_b128 v[24:27], v5 offset:2048')
    a('s_waitcnt vmcnt(0) lgkmcnt(0)')
    for tb in range(4):
        for j in range(3):
            d = 32 + 12 * tb + 4 * j
            a('v_mfma_f32_16x16x32_bf16 v[%d:%d], v[%d:%d], v[%d:%d], 0' % (d, d + 3, 16 + 4 * j, 19 + 4 * j, 80 + 4 * tb, 83 + 4 * tb))
    a('s_nop 7')
    for tb in range(4): a('v_add_f32 v%d, 0x%x, v%d' % (40 + 12 * tb, f2u(1e-6), 40 + 12 * tb))
    for tb in range(4): a('v_rcp_f32 v%d, v%d' % (40 + 12 * tb, 40 + 12 * tb))
    for tb in range(4):
        d = 32 + 12 * tb
        a('v_mov_b32 v%d, v%d' % (d + 9, d + 8))
        for r in range(0, 8, 2): a('v_pk_mul_f32 v[%d:%d], v[%d:%d], v[%d:%d]' % (d + r, d + r + 1, d + r, d + r + 1, d + 8, d + 9))
        for r in range(4): a('v_cvt_pk_bf16_f32 v%d, v%d, v%d' % (80 + 4 * tb + r, d + 2 * r, d + 2 * r + 1))
        a('buffer_store_dwordx4 v[%d:%d], v3, s[%d:%d], %s offen offset:%d' % (80 + 4 * tb, 83 + 4 * tb, SRD_B, SRD_B + 3, 's30' if tb >> 1 else '0', 1024 * (tb & 1)))
    if stamp:
        a('s_waitcnt vmcnt(0)')
        for _ in range(4): st.take(a)
        st.flush(a, P_WS, 's2', 2, 'v0')
    a.label(end)
    a('s_endpgm')
    kernel_desc(a, name, 96, 102, 96)
```

```python
import sys, json
from kern_d import *
from kern_ace import *
from kern_small import *
HEADER = open('sequential_preLN__linear_attn_block__glu_gated_glu__prompt.s.ref').read().split('; Override')[0] if __name__ == '__main__' else ''
def gen(path, opt=None, stamp=False, header=''):
    opt = opt or {}
    a = Asm()
    if header: a.raw(header.rstrip('\n'))
    oa, oc, od, oe = (opt.get(k, {}) for k in 'acde')
    a.raw('; @launch kernel=ln1_kernel grid=(480,1,1) block=(256,1,1) lds=16384')
    a.raw('; @launch kernel=qkv_kernel grid=(256,1,1) block=(256,1,1) lds=%d' % a_lds(oa))
    a.raw('; @launch kernel=attn_kernel grid=(256,1,1) block=(256,1,1) lds=4096')
    a.raw('; @launch kernel=wo_kernel grid=(256,1,1) block=(256,1,1) lds=%d' % ce_lds(oc))
    a.raw('; @launch kernel=glu_kernel grid=(256,1,1) block=(256,1,1) lds=%d' % d_lds(od))
    a.raw('; @launch kernel=down_kernel grid=(256,1,1) block=(256,1,1) lds=%d' % ce_lds(oe))
    for i in range(opt.get('nop', 0)):
        a.raw('; @launch kernel=nop_kernel grid=(256,1,1) block=(256,1,1) lds=0')
    a.raw('.amdgcn_target "amdgcn-amd-amdhsa--gfx950"')
    kern_k0(a, 'ln1_kernel', 0, stamp)
    kern_a(a, 'qkv_kernel', 1, stamp, oa)
    kern_b(a, 'attn_kernel', 2, stamp)
    kern_ce(a, 'wo_kernel', 3, 'C', stamp, oc)
    kern_d(a, 'glu_kernel', 4, stamp, od)
    kern_ce(a, 'down_kernel', 5, 'E', stamp, oe)
    if opt.get('nop'):
        kernel_begin(a, 'nop_kernel'); a('s_endpgm'); kernel_desc(a, 'nop_kernel', 8, 16, 8)
    open(path, 'w').write(a.text())
if __name__ == '__main__':
    gen('sequential_preLN__linear_attn_block__glu_gated_glu__prompt.s', {'d': {'PF': 2, 'NS': 4}}, False, HEADER)
    gen('v_nop4.s', {'d': {'PF': 2, 'NS': 4}, 'nop': 4}, False, HEADER)
```

```python
from asmlib import *

P_X, P_WQKV, P_WO, P_BX, P_WG, P_WU, P_WD, P_OUT, P_DBG, P_WS = 4, 6, 8, 10, 12, 14, 16, 18, 20, 22
S_WAVE = 24
SRD_W, SRD_X0, SRD_X1, SRD_A, SRD_B = 32, 36, 40, 44, 48
S_WOFF, S_XOFF, S_XOFF2, S_CNT = 52, 53, 54, 55
SRD_T = 64

WS_XN, WS_PQ, WS_O, WS_H, WS_HH = 0, 4 << 20, 8 << 20, 12 << 20, 16 << 20
WS_KVP = 32 << 20
WS_SMALL = 36 << 20
SM_ST2, SM_MX, SM_MH, SM_RSTD, SM_WBAR = 0, 256 << 10, 272 << 10, 288 << 10, 304 << 10
SM_BYTES = 320 << 10
LOG2E = 1.4426950408889634

def load_ptrs(a):
    a('s_load_dwordx16 s[4:19], s[0:1], 0')
    a('s_load_dwordx4 s[20:23], s[0:1], 64')

def wave_id(a, vtmp):
    a('v_lshrrev_b32 v%d, 6, v0' % vtmp)
    a('s_nop 0')
    a('v_readfirstlane_b32 s%d, v%d' % (S_WAVE, vtmp))

def is_vmem(s):
    return s.startswith('buffer_') or s.startswith('global_')

class Gemm:
    def __init__(self, NP, CB, KS, NST, U, SB, PF, D, RING, acc, xr, wr, vX, dma, wpitch, rdoff,
                 wave_off, swap=None, opt=None):
        self.__dict__.update(locals())
        self.TB = 2 * NP
        self.swap = swap or (lambda cb: False)
        self.opt = opt or {}
        self.F = KS * CB
        assert PF <= U - 2 and D < RING and (self.F * U) % RING == 0
        if self.TB == 2: assert D % 2 == 0 and self.F % 2 == 0
        self.vmlog = []
        self.hooks = {}
        self.loop_hooks = {}
        self.first_zero = False

    def vmem_ops(self, slot):
        o = self.opt
        xs = []
        for ks in range(self.KS):
            for tb in range(self.TB):
                p, t = divmod(tb, 2)
                i = 2 * ks + t
                so = S_XOFF if i < 4 else S_XOFF2
                xs.append(([], 'buffer_load_dwordx4 %s, %s, s[%d:%d], s%d offen offset:%d %s' % (
                    self.xr(slot, ks, tb), self.vX, SRD_X0 + 4 * p, SRD_X0 + 4 * p + 3, so, (i & 3) * 1024, o.get('xflag', ''))))
        ds = []
        for (v, m0add, imm) in self.dma:
            pre = [] if m0add is None else ['s_add_u32 m0, %s, %d' % (self.wave_off, m0add + slot * self.SB)]
            ds.append((pre, 'buffer_load_dwordx4 %s, s[%d:%d], s%d offen offset:%d %s lds' % (
                v, SRD_W, SRD_W + 3, S_WOFF, imm, o.get('wflag', ''))))
        if o.get('wfirst'): return ds + xs
        ops = []
        i = j = 0
        while i < len(ds) or j < len(xs):
            if j >= len(xs) or (i < len(ds) and i * len(xs) <= j * len(ds)):
                ops.append(ds[i]); i += 1
            else:
                ops.append(xs[j]); j += 1
        return ops

    def advance(self):
        r = ['s_add_u32 s%d, s%d, %d' % (S_WOFF, S_WOFF, self.KS * 32 * self.wpitch),
             's_add_u32 s%d, s%d, %d' % (S_XOFF, S_XOFF, self.KS * 2048)]
        if self.KS > 2:
            r.append('s_add_u32 s%d, s%d, %d' % (S_XOFF2, S_XOFF2, self.KS * 2048))
        return r

    def reads(self, gf):
        st, f = divmod(gf, self.F)
        ks, cb = divmod(f, self.CB)
        w = self.wr(gf % self.RING)
        r = []
        for half in range(2):
            v, imm = self.rdoff(st, ks, cb, half)
            if v is None: continue
            if imm < 0:
                r.append('ds_read_b128 %s, %s offset:%d' % (w(0, 4), v, -imm - 1))
            else:
                r.append('ds_read_b64_tr_b16 %s, %s offset:%d' % (w(2 * half, 2), v, imm))
        return r

    def note(self, s, tag=None):
        if is_vmem(s): self.vmlog.append(tag)

    def emit(self, a, s, tag=None):
        self.note(s, tag); a(s)

    def younger(self, stage):
        n = 0
        for t in reversed(self.vmlog):
            if t == stage: return n
            n += 1
        raise AssertionError('stage %d never loaded' % stage)

    def prologue_init(self, a, woff='0', xoff=None):
        a('s_mov_b32 s%d, %s' % (S_WOFF, woff))
        if xoff is None:
            a('s_mov_b32 s%d, 0' % S_XOFF)
            if self.KS > 2: a('s_mov_b32 s%d, 4096' % S_XOFF2)
        else:
            a('s_mov_b32 s%d, %s' % (S_XOFF, xoff))
            if self.KS > 2: a('s_add_u32 s%d, %s, 4096' % (S_XOFF2, xoff))

    def prologue_stage(self, a, s):
        for pre, op in self.vmem_ops(s % self.U):
            for p in pre:
                a(p); a('s_nop 0')
            self.emit(a, op, s)
        for i in self.advance(): a(i)

    def prologue_start(self, a):
        a('s_waitcnt vmcnt(%d)' % min(63, self.younger(0)))
        a('s_barrier')
        for gf in range(self.D):
            for r in self.reads(gf): a(r)
        a('s_waitcnt lgkmcnt(%d)' % self.lgk(0, self.D))

    def lgk(self, gf, upto):
        G = 2 if self.TB == 2 else 1
        return min(15, sum(len(self.reads(x)) for x in range(gf + G, upto)))

    def stage(self, a, s, nloaded, last, hooks, loop=None, vmn=None):
        TB, CB, F, D = self.TB, self.CB, self.F, self.D
        u = s % self.U
        nm = F * TB
        gaps = [[] for _ in range(nm)]
        G = 2 if TB == 2 else 1
        ngrp = nm // 4
        endf = F if last else F + D
        bargrp = (F - D) // G - 1
        free = []
        for g in range(ngrp):
            f = g * G
            if TB == 2:
                for j in range(2):
                    if f + j + D < endf: gaps[4 * g + 2 * j] += self.reads(s * F + f + j + D)
            else:
                r = self.reads(s * F + f + D) if f + D < endf else []
                gaps[4 * g] += r[:1]; gaps[4 * g + 2] += r[1:]
            free.append(4 * g + 1)
        ops = [(p, op, s + self.PF) for p, op in self.vmem_ops((s + self.PF) % self.U)] if nloaded else []
        lastg = bargrp if not last else ngrp - 1
        slots = free[:lastg + 1]
        if len(ops) > len(slots):
            slots = sorted(slots + [x + 2 for x in slots[:-1]])
        place = {}
        for i, x in enumerate(ops):
            g = slots[(i * len(slots)) // len(ops)] if len(ops) <= len(slots) else slots[min(len(slots) - 1, (i * len(slots)) // len(ops))]
            place.setdefault(g, []).append(x)
        for fr, ins in hooks:
            cand = [g for g in free if g not in place and g >= fr * nm] or [free[-1]]
            place.setdefault(cand[0], []).append(([], ins, None))
        post = [[] for _ in range(nm)]
        for g in sorted(place):
            for p, op, tag in place[g]:
                if p:
                    if post[g] or g == 0: post[g] += [(x, None) for x in p] + [('s_nop 0', None)]
                    else: post[g - 1] += [(x, None) for x in p]
                for x in (op if isinstance(op, list) else [op]): post[g].append((x, tag))
        if ops:
            lastv = max(g for g in place if any(t is not None for _, _, t in place[g]))
            adv = self.advance()
            g = lastv + 1
            for x in adv:
                while g < nm - 1 and (len(gaps[g]) + len(post[g]) >= 2 or any(is_vmem(y) for y, _ in post[g]) or g == 4 * bargrp + 3): g += 1
                post[g].append((x, None))
        if loop:
            post[nm - 3].append(('s_sub_u32 s%d, s%d, 1' % (S_CNT, S_CNT), None))
            post[nm - 3].append(('s_cmp_lg_u32 s%d, 0' % S_CNT, None))
            for g in (nm - 2, nm - 1): assert not any(y.startswith('s_add') for y, _ in post[g])
        j = 0
        res = None
        for f in range(F):
            ks, cb = divmod(f, CB)
            w = self.wr((s * F + f) % self.RING)
            for tb in range(TB):
                A, B = w(0, 4), self.xr(u, ks, tb)
                if self.swap(cb): A, B = B, A
                c = self.acc(tb, cb)
                cin = '0' if (self.first_zero and s == 0 and ks == 0) else c
                if not self.opt.get('no_mfma'):
                    a('v_mfma_f32_16x16x32_bf16 %s, %s, %s, %s' % (c, A, B, cin))
                for x in gaps[j]: a(x)
                for x, tag in post[j]: self.emit(a, x, tag)
                if j % 4 == 3:
                    g = j // 4
                    nf = (g + 1) * G
                    if nf < F or not last:
                        w8 = 'lgkmcnt(%d)' % self.lgk(s * F + nf, s * F + min(endf, nf + D))
                        if g == bargrp and not last:
                            res = self.younger(s + 1)
                            a('s_waitcnt vmcnt(%d) %s' % (min(63, res if vmn is None else min(vmn, res)), w8))
                            a('s_barrier')
                        else:
                            a('s_waitcnt %s' % w8)
                j += 1
        if loop: a('s_cbranch_scc1 %s' % loop)
        return res

    def run(self, a, ntail=None, nhead=0):
        U, NST = self.U, self.NST
        assert nhead % U == 0
        if ntail is None:
            ntail = self.PF + (NST - nhead - self.PF) % U
        nloop = (NST - nhead - ntail) // U
        assert nhead + nloop * U + ntail == NST and ntail >= self.PF
        s = 0
        for s in range(nhead):
            self.stage(a, s, True, False, self.hooks.get(s, []))
        s = nhead
        if nloop == 1:
            for u in range(U): self.stage(a, s + u, True, False, self.hooks.get(s + u, []) + self.loop_hooks.get(u, []))
        elif nloop > 1:
            assert not (self.first_zero and nhead == 0)
            save = list(self.vmlog)
            d = Asm(); n1 = [self.stage(d, s + u, True, False, self.loop_hooks.get(u, [])) for u in range(U)]
            n2 = [self.stage(d, s + U + u, True, False, self.loop_hooks.get(u, [])) for u in range(U)]
            self.vmlog = save
            a('s_mov_b32 s%d, %d' % (S_CNT, nloop))
            lab = a.newlabel('Lmain')
            if self.opt.get('align'): a.raw('.p2align %d' % self.opt['align'])
            a.label(lab)
            for u in range(U):
                self.stage(a, s + u, True, False, self.loop_hooks.get(u, []), loop=lab if u == U - 1 else None, vmn=min(n1[u], n2[u]))
            sh = (nloop - 1) * U
            self.vmlog = [None if t is None else t + sh for t in self.vmlog]
        s = nhead + nloop * U
        for t in range(s, NST):
            self.stage(a, t, t + self.PF < NST, t == NST - 1, self.hooks.get(t, []))
```

```python
from gemm import *
from kern_small import KVP_REC, gu_touch

def swz_src(a, vL, pitch, dst, t0, t1):
    a('v_lshrrev_b32 v%d, 3, v%d' % (t0, vL))
    a('v_mul_u32_u24 v%d, %d, v%d' % (dst, pitch, t0))
    a('v_lshrrev_b32 v%d, 3, v%d' % (t0, vL))
    a('v_and_b32 v%d, 6, v%d' % (t0, t0))
    a('v_and_b32 v%d, 7, v%d' % (t1, vL))
    a('v_xor_b32 v%d, v%d, v%d' % (t0, t0, t1))
    a('v_lshl_add_u32 v%d, v%d, 4, v%d' % (dst, t0, dst))

def swz_rd(a, vL, dst, t0, t1):
    a('v_lshrrev_b32 v%d, 2, v%d' % (t0, vL))
    a('v_lshlrev_b32 v%d, 7, v%d' % (t0, t0))
    a('v_and_b32 v%d, 3, v%d' % (t1, vL))
    a('v_lshl_add_u32 v%d, v%d, 3, v%d' % (t0, t1, t0))
    a('v_bfe_u32 v%d, v%d, 3, 2' % (t1, vL))
    a('v_lshl_add_u32 v%d, v%d, 5, v%d' % (dst, t1, t0))
    for u in range(1, 4):
        a('v_xor_b32 v%d, %d, v%d' % (dst + u, 32 * u, dst))

def phi(a, regs, tmp, sL, sE):
    n = len(regs)
    for i, r in enumerate(regs): a('v_pk_mul_f32 v[%d:%d], v[%d:%d], s[%d:%d]' % (tmp + 2 * i, tmp + 2 * i + 1, r, r + 1, sL, sL + 1))
    for i in range(2 * n): a('v_min_f32 v%d, 0, v%d' % (tmp + i, tmp + i))
    for i in range(2 * n): a('v_exp_f32 v%d, v%d' % (tmp + i, tmp + i))
    for r in regs:
        a('v_max_f32 v%d, 0, v%d' % (r, r)); a('v_max_f32 v%d, 0, v%d' % (r + 1, r + 1))
    for i, r in enumerate(regs): a('v_pk_add_f32 v[%d:%d], v[%d:%d], v[%d:%d]' % (r, r + 1, r, r + 1, tmp + 2 * i, tmp + 2 * i + 1))
    for r in regs: a('v_pk_add_f32 v[%d:%d], v[%d:%d], s[%d:%d]' % (r, r + 1, r, r + 1, sE, sE + 1))

A_SB = 24576
def a_lds(opt): return A_SB * 4 + 49152

def kern_a(a, name, kidx, stamp=False, opt=None):
    opt = opt or {}
    NS, PF = 4, 2
    st = Stamps(stamp, kidx)
    kernel_begin(a, name)
    end = a.newlabel('Lend')
    a('s_cmp_ge_u32 s2, 256')
    a('s_cbranch_scc1 %s' % end)
    load_ptrs(a)
    st.take(a)
    S_RB, S_HP, S_T0, S_T1, S_WVO, S_PN = 25, 26, 27, 28, 29, 30
    vTID, vL, vX, vT, vD, vRdB, vJ = 96, 97, 98, 99, 100, 108, 116
    T = 120
    a('v_mov_b32 v%d, v0' % vTID)
    wave_id(a, 1)
    a('v_and_b32 v%d, 63, v0' % vL)
    a('v_lshlrev_b32 v%d, 4, v%d' % (vX, vL))
    a('''s_and_b32 s%d, s2, 1
    s_lshl_b32 s%d, s%d, 3
    s_bfe_u32 s%d, s2, 0x30003
    s_add_u32 s%d, s%d, s%d
    s_bfe_u32 s%d, s2, 0x20001
    s_lshl_b32 s%d, s%d, 2
    s_lshr_b32 s%d, s2, 6
    s_add_u32 s%d, s%d, s%d''' % (S_RB, S_RB, S_RB, S_T0, S_RB, S_RB, S_T0, S_HP, S_HP, S_HP, S_T0, S_HP, S_HP, S_T0))
    a('s_lshl_b32 s%d, s%d, 2' % (S_PN, S_RB))
    a('s_add_u32 s%d, s%d, s%d' % (S_PN, S_PN, S_WAVE))
    swz_src(a, vL, 6144, 2, 3, 4)
    a('s_mul_i32 s%d, s%d, %d' % (S_T0, S_WAVE, 16 * 6144))
    a('v_add_u32 v%d, s%d, v2' % (vD, S_T0))
    for i in range(1, 6):
        seg, j = divmod(i, 2)
        a('v_add_u32 v%d, %d, v%d' % (vD + i, seg * 2048 + j * 8 * 6144 - 1024 * (i & 3), vD))
    a('s_mul_i32 s%d, s%d, 6144' % (S_WVO, S_WAVE))
    a('s_waitcnt lgkmcnt(0)')
    a('s_lshl_b32 s%d, s%d, 7' % (S_T1, S_HP))
    a('s_add_u32 s%d, s%d, s%d' % (SRD_W, P_WQKV, S_T1))
    a('s_addc_u32 s%d, s%d, 0' % (SRD_W + 1, P_WQKV + 1))
    a('s_sub_u32 s%d, %d, s%d' % (SRD_W + 2, 1024 * 6144, S_T1))
    a('s_mov_b32 s%d, 0x20000' % (SRD_W + 3))
    a('s_lshl_b32 s%d, s%d, 16' % (S_T0, S_PN))
    srd_off(a, SRD_X0, P_WS, 's%d' % S_T0, 65536)
    accb = lambda tb, cb: 4 * (cb * 2 + tb) if cb >= 4 else 4 * (tb * 4 + cb)
    acc = lambda tb, cb: vr(accb(tb, cb), 4)
    xr = lambda slot, ks, tb: ar(16 * slot + 8 * ks + 4 * tb, 4)
    wr = lambda ring: Reg('a', 64 + 4 * ring)
    dma = [('v%d' % (vD + i), (0 if i == 0 else 4096 if i == 4 else None), 1024 * (i & 3)) for i in range(6)]
    g = Gemm(NP=1, CB=12, KS=2, NST=16, U=NS, SB=A_SB, PF=PF, D=opt.get('D', 6), RING=12,
             acc=acc, xr=xr, wr=wr, vX='v%d' % vX, dma=dma, wpitch=6144,
             rdoff=lambda s, ks, cb, half: ('v%d' % (vRdB + (cb & 3) + 4 * ((s & 3) >> 1)),
                                            (s & 1) * A_SB + (2 * ks + half) * 6144 + (cb >> 2) * 2048),
             wave_off='s%d' % S_WVO, swap=lambda cb: cb >= 4, opt=opt)
    g.prologue_init(a)
    for s in range(PF): g.prologue_stage(a, s)
    swz_rd(a, vL, vRdB, 2, 3)
    for u in range(4): a('v_add_u32 v%d, %d, v%d' % (vRdB + 4 + u, 2 * A_SB, vRdB + u))
    if opt.get('gu'):
        a('v_lshlrev_b32 v%d, 7, v%d' % (vT, vL))
        t = gu_touch(a, opt['gu'], vT, vJ, 58, 59)
        g.hooks[opt.get('gu_stage', 15)] = [(opt.get('gu_frac', 0.0), t)]
    for r in range(96): a('v_mov_b32 v%d, 0' % r)
    g.prologue_start(a)
    st.take(a)
    g.run(a)
    st.take(a)
    a('s_mov_b32 s60, 0x%x' % f2u(LOG2E)); a('s_mov_b32 s61, s60')
    a('s_mov_b32 s62, 0x%x' % f2u(1e-6)); a('s_mov_b32 s63, s62')
    ONE, KF, VF, KV = T + 16, T + 20, T + 36, 0
    for r in range(4): a('v_mov_b32 v%d, 0x3f803f80' % (ONE + r))
    a('s_nop 3')
    for cb in range(4, 8, 2):
        b = accb(0, cb)
        phi(a, [b + 2 * i for i in range(8)], T, 60, 62)
    for i in range(16): a('v_cvt_pk_bf16_f32 v%d, v%d, v%d' % (KF + i, 32 + 2 * i, 33 + 2 * i))
    for i in range(16): a('v_cvt_pk_bf16_f32 v%d, v%d, v%d' % (VF + i, 64 + 2 * i, 65 + 2 * i))
    a('s_nop 1')
    for h2 in range(2):
        for db in range(2):
            for eb in range(2):
                d = 32 + 4 * (h2 * 4 + db * 2 + eb)
                a('v_mfma_f32_16x16x32_bf16 v[%d:%d], %s, %s, 0' % (d, d + 3, vr(KF + 4 * (h2 * 2 + db), 4), vr(VF + 4 * (h2 * 2 + eb), 4)))
            d = 64 + 4 * (h2 * 2 + db)
            a('v_mfma_f32_16x16x32_bf16 v[%d:%d], %s, %s, 0' % (d, d + 3, vr(KF + 4 * (h2 * 2 + db), 4), vr(ONE, 4)))
    a('s_lshl_b32 s%d, s%d, 16' % (S_T0, S_PN))
    a('s_lshl_b32 s%d, s%d, 12' % (S_T1, S_HP))
    a('s_add_u32 s%d, s%d, s%d' % (S_T0, S_T0, S_T1))
    a('s_add_u32 s%d, s%d, %d' % (S_T0, S_T0, WS_PQ))
    srd_off(a, SRD_B, P_WS, 's%d' % S_T0, 4096)
    a('s_mul_i32 s%d, s%d, 12288' % (S_T0, S_WAVE))
    a('s_add_u32 s%d, s%d, %d' % (S_T0, S_T0, A_SB * NS))
    a('v_add_u32 v%d, s%d, v%d' % (vD, S_T0, vX))
    phi(a, [2 * i for i in range(8)], T, 60, 62)
    for i in range(12): a('ds_write_b128 v%d, v[%d:%d] offset:%d' % (vD, 32 + 4 * i, 35 + 4 * i, 1024 * i))
    for i in range(8): a('v_cvt_pk_bf16_f32 v%d, v%d, v%d' % (KF + i, 2 * i, 2 * i + 1))
    for h2 in range(2):
        a('buffer_store_dwordx4 %s, v%d, s[%d:%d], 0 offen offset:%d' % (vr(KF + 4 * h2, 4), vX, SRD_B, SRD_B + 3, 2048 * h2))
    a('s_waitcnt lgkmcnt(0)')
    a('s_barrier')
    a('s_lshl_b32 s%d, s%d, 11' % (S_T0, S_WAVE))
    a('s_add_u32 s%d, s%d, %d' % (S_T0, S_T0, A_SB * NS))
    a('v_add_u32 v%d, s%d, v%d' % (vD, S_T0, vX))
    a('s_lshl_b32 s%d, s%d, 10' % (S_T0, S_WAVE))
    a('s_add_u32 s%d, s%d, %d' % (S_T0, S_T0, A_SB * NS + 8192))
    a('v_add_u32 v%d, s%d, v%d' % (vD + 1, S_T0, vX))
    for w in range(4):
        a('ds_read_b128 v[%d:%d], v%d offset:%d' % (32 + 12 * w, 35 + 12 * w, vD, 12288 * w))
        a('ds_read_b128 v[%d:%d], v%d offset:%d' % (36 + 12 * w, 39 + 12 * w, vD, 12288 * w + 1024))
        a('ds_read_b128 v[%d:%d], v%d offset:%d' % (40 + 12 * w, 43 + 12 * w, vD + 1, 12288 * w))
    phi(a, [16 + 2 * i for i in range(8)], T, 60, 62)
    for i in range(8): a('v_cvt_pk_bf16_f32 v%d, v%d, v%d' % (VF + i, 16 + 2 * i, 17 + 2 * i))
    for h2 in range(2):
        a('buffer_store_dwordx4 %s, v%d, s[%d:%d], 0 offen offset:%d' % (vr(VF + 4 * h2, 4), vX, SRD_B, SRD_B + 3, 2048 * h2 + 1024))
    a('s_lshr_b32 s%d, s%d, 1' % (S_T0, S_WAVE))
    a('s_lshl_b32 s%d, s%d, 1' % (S_T1, S_HP))
    a('s_add_u32 s%d, s%d, s%d' % (S_T0, S_T0, S_T1))
    a('s_lshl_b32 s%d, s%d, 4' % (S_T0, S_T0))
    a('s_add_u32 s%d, s%d, s%d' % (S_T0, S_T0, S_RB))
    a('s_mul_i32 s%d, s%d, %d' % (S_T0, S_T0, KVP_REC))
    a('s_add_u32 s%d, s%d, %d' % (S_T0, S_T0, WS_KVP))
    srd_off(a, SRD_A, P_WS, 's%d' % S_T0, KVP_REC)
    a('s_and_b32 s%d, s%d, 1' % (S_T0, S_WAVE))
    a('s_lshl_b32 s%d, s%d, 6' % (S_T1, S_T0))
    a('s_add_u32 s%d, s%d, 4096' % (S_T1, S_T1))
    a('s_lshl_b32 s%d, s%d, 11' % (S_T0, S_T0))
    a('v_and_b32 v%d, 0x30, v%d' % (vD + 2, vL))
    a('s_waitcnt lgkmcnt(0)')
    for r in range(0, 12, 2):
        a('v_pk_add_f32 v[%d:%d], v[%d:%d], v[%d:%d]' % (32 + r, 33 + r, 32 + r, 33 + r, 44 + r, 45 + r))
        a('v_pk_add_f32 v[%d:%d], v[%d:%d], v[%d:%d]' % (56 + r, 57 + r, 56 + r, 57 + r, 68 + r, 69 + r))
    for r in range(0, 12, 2):
        a('v_pk_add_f32 v[%d:%d], v[%d:%d], v[%d:%d]' % (32 + r, 33 + r, 32 + r, 33 + r, 56 + r, 57 + r))
    a('buffer_store_dwordx4 v[32:35], v%d, s[%d:%d], s%d offen' % (vX, SRD_A, SRD_A + 3, S_T0))
    a('buffer_store_dwordx4 v[36:39], v%d, s[%d:%d], s%d offen offset:1024' % (vX, SRD_A, SRD_A + 3, S_T0))
    a('buffer_store_dwordx4 v[40:43], v%d, s[%d:%d], s%d offen' % (vD + 2, SRD_A, SRD_A + 3, S_T1))
    if stamp:
        st.take(a)
        a('s_waitcnt vmcnt(0)')
        st.take(a)
        st.flush(a, P_WS, 's2', 0, 'v%d' % vTID)
    a.label(end)
    a('s_endpgm')
    kernel_desc(a, name, 200 + 112, 102, 200)

CE_SB = 16384
def ce_lds(opt): return CE_SB * 4 + 2048

def kern_ce(a, name, kidx, which, stamp=False, opt=None):
    opt = opt or {}
    isC = which == 'C'
    K = 1024 if isC else 3584
    PF = 2
    st = Stamps(stamp, kidx)
    kernel_begin(a, name)
    end = a.newlabel('Lend')
    a('s_cmp_ge_u32 s2, 256')
    a('s_cbranch_scc1 %s' % end)
    load_ptrs(a)
    st.take(a)
    S_RT, S_CT, S_T0, S_T1, S_WVO, S_PN = 25, 26, 27, 28, 29, 30
    vTID, vL, vX, vRow, vD, vRdB, vWB, vTok, vT, vJ = 40, 41, 42, 43, 44, 48, 52, 53, 54, 55
    RES, SC, T = 56, 72, 80
    a('v_mov_b32 v%d, v0' % vTID)
    wave_id(a, 1)
    a('v_and_b32 v%d, 63, v0' % vL)
    a('v_lshlrev_b32 v%d, 4, v%d' % (vX, vL))
    a('''s_bfe_u32 s%d, s2, 0x20001
    s_lshl_b32 s%d, s%d, 2
    s_bfe_u32 s%d, s2, 0x20003
    s_add_u32 s%d, s%d, s%d
    s_and_b32 s%d, s2, 1
    s_lshl_b32 s%d, s%d, 3
    s_lshr_b32 s%d, s2, 5
    s_add_u32 s%d, s%d, s%d''' % (S_RT, S_RT, S_RT, S_T0, S_RT, S_RT, S_T0, S_CT, S_CT, S_CT, S_T0, S_CT, S_CT, S_T0))
    a('s_lshl_b32 s%d, s%d, 2' % (S_PN, S_RT))
    a('s_add_u32 s%d, s%d, s%d' % (S_PN, S_PN, S_WAVE))
    swz_src(a, vL, 2048, 2, 3, 4)
    a('s_lshl_b32 s%d, s%d, 16' % (S_T0, S_WAVE))
    a('v_add_u32 v%d, s%d, v2' % (vD, S_T0))
    for i in range(1, 4):
        a('v_add_u32 v%d, %d, v%d' % (vD + i, i * (8 * 2048 - 1024), vD))
    a('s_lshl_b32 s%d, s%d, 12' % (S_WVO, S_WAVE))
    a('s_lshl_b32 s%d, s%d, 7' % (S_T1, S_CT))
    a('s_mul_i32 s%d, s%d, %d' % (S_T0, S_PN, K * 64))
    a('s_add_u32 s%d, s%d, %d' % (S_T0, S_T0, WS_O if isC else WS_HH))
    a('s_waitcnt lgkmcnt(0)')
    PW = P_WO if isC else P_WD
    a('s_add_u32 s%d, s%d, s%d' % (SRD_W, PW, S_T1))
    a('s_addc_u32 s%d, s%d, 0' % (SRD_W + 1, PW + 1))
    a('s_sub_u32 s%d, %d, s%d' % (SRD_W + 2, K * 2048, S_T1))
    a('s_mov_b32 s%d, 0x20000' % (SRD_W + 3))
    srd_off(a, SRD_X0, P_WS, 's%d' % S_T0, K * 64)
    srd_off(a, SRD_X1, P_WS, WS_SMALL, SM_BYTES)
    CB = 5 if isC else 4
    accb = lambda tb, cb: 4 * (tb * 4 + cb) if cb < 4 else 32 + 4 * tb
    acc = lambda tb, cb: vr(accb(tb, cb), 4)
    xr = lambda slot, ks, tb: ar(32 * slot + 8 * ks + 4 * tb, 4)
    wr = lambda ring: Reg('a', 128 + 4 * ring)
    dma = [('v%d' % (vD + i), (0 if i == 0 else None), 1024 * i) for i in range(4)]
    def rdoff(s, ks, cb, half):
        if cb == 4:
            return (None, 0) if half else ('v%d' % vWB, -((s * 4 + ks) * 64) - 1)
        return ('v%d' % (vRdB + cb), (s & 3) * CE_SB + ks * 4096 + half * 2048)
    g = Gemm(NP=1, CB=CB, KS=4, NST=K // 128, U=4, SB=CE_SB, PF=PF, D=opt.get('D', 4), RING=8,
             acc=acc, xr=xr, wr=wr, vX='v%d' % vX, dma=dma, wpitch=2048, rdoff=rdoff,
             wave_off='s%d' % S_WVO, opt=opt)
    g.prologue_init(a)
    if isC:
        a('s_and_b32 s58, s%d, 1' % S_WAVE)
        a('s_lshl_b32 s58, s58, 10')
        a('s_add_u32 m0, s58, %d' % (4 * CE_SB))
        a('s_add_u32 s58, s58, %d' % SM_WBAR)
        g.emit(a, 'buffer_load_dwordx4 v%d, s[%d:%d], s58 offen lds' % (vX, SRD_X1, SRD_X1 + 3))
    for s in range(PF): g.prologue_stage(a, s)
    a('s_lshl_b32 s%d, s%d, 16' % (S_T0, S_PN))
    a('s_lshl_b32 s58, s%d, 12' % S_CT)
    a('s_add_u32 s58, s58, s%d' % S_T0)
    a('s_add_u32 s58, s58, %d' % WS_H)
    a('s_add_u32 s59, s%d, s%d' % (S_T0, S_T1))
    srd_off(a, SRD_A, P_WS, 's58', 4096)
    srd_off(a, SRD_B, P_X if isC else P_OUT, 's59', 31 * 2048 + 128)
    a('s_mov_b32 s61, 32768')
    a('s_lshl_b32 s62, s%d, 7' % S_PN)
    a('v_and_b32 v2, 15, v%d' % vL)
    a('v_lshlrev_b32 v%d, 2, v2' % vTok)
    a('v_lshlrev_b32 v2, 11, v2')
    late = []
    if isC:
        a('v_lshrrev_b32 v3, 4, v%d' % vL)
        a('v_lshl_add_u32 v%d, v3, 3, v2' % vRow)
        a('v_lshlrev_b32 v3, 4, v3')
        a('v_add_u32 v%d, %d, v3' % (vWB, 4 * CE_SB))
        a('s_add_u32 s63, s62, %d' % SM_MX)
        for tb in range(2):
            for cb in range(4):
                r = RES + 2 * (tb * 4 + cb)
                late.append('buffer_load_dwordx2 v[%d:%d], v%d, s[%d:%d], %s offen offset:%d' % (r, r + 1, vRow, SRD_B, SRD_B + 3, 's61' if tb else '0', 32 * cb))
        for tb in range(2):
            late.append('buffer_load_dword v%d, v%d, s[%d:%d], s63 offen offset:%d' % (SC + 2 * tb, vTok, SRD_X1, SRD_X1 + 3, 64 * tb))
    else:
        a('v_bfe_u32 v4, v%d, 4, 1' % vL)
        a('v_lshl_add_u32 v2, v4, 5, v2')
        a('v_lshrrev_b32 v4, 5, v%d' % vL)
        a('v_lshl_add_u32 v%d, v4, 4, v2' % vRow)
        a('s_add_u32 s63, s62, %d' % SM_MH)
        a('s_add_u32 s62, s62, %d' % SM_RSTD)
        for tb in range(2):
            for kk in range(2):
                r = RES + 4 * (tb * 2 + kk)
                late.append('buffer_load_dwordx4 v[%d:%d], v%d, s[%d:%d], 0 offen offset:%d' % (r, r + 3, vX, SRD_A, SRD_A + 3, kk * 2048 + tb * 1024))
        for tb in range(2):
            late.append('buffer_load_dword v%d, v%d, s[%d:%d], s63 offen offset:%d' % (SC + 2 * tb, vTok, SRD_X1, SRD_X1 + 3, 64 * tb))
            late.append('buffer_load_dword v%d, v%d, s[%d:%d], s62 offen offset:%d' % (SC + 4 + 2 * tb, vTok, SRD_X1, SRD_X1 + 3, 64 * tb))
    g.hooks[g.NST - 2] = [(0.0, x) for x in late]
    nafter = 0
    if opt.get('code'):
        a('v_lshlrev_b32 v%d, 7, v%d' % (vT, vL))
        g.hooks[1] = [(0.9, code_touch(a, opt['code'], 'Lcode_end', vT, vJ, 96, 100))]
    if opt.get('gu'):
        a('v_lshlrev_b32 v%d, 7, v%d' % (vT, vL))
        g.hooks[g.NST - 1] = [(0.0, gu_touch(a, opt['gu'], vT, vJ, 58, 59))]
        nafter = 1
    if opt.get('slow'):
        a('v_and_b32 v2, 15, v%d' % vL)
        a('v_lshlrev_b32 v%d, 11, v2' % vT)
        a('s_lshr_b32 s58, s2, 3')
        a('s_lshl_b32 s58, s58, 15')
        a('s_and_b32 s59, s2, 1')
        a('s_lshl_b32 s59, s59, 10')
        a('s_add_u32 s58, s58, s59')
        a('s_add_u32 s58, s58, %d' % (384 + opt['slow'] * 512 * 2048))
        a('s_mov_b32 s%d, s%d' % (SRD_T, PW))
        a('s_mov_b32 s%d, s%d' % (SRD_T + 1, PW + 1))
        a('s_cmp_eq_u32 s%d, 0' % S_WAVE)
        a('s_cselect_b32 s%d, %d, 0' % (SRD_T + 2, K * 2048))
        a('s_mov_b32 s%d, 0x20000' % (SRD_T + 3))
        g.loop_hooks[0] = [(0.9, ['buffer_load_dword v%d, v%d, s[%d:%d], s58 offen' % (vJ, vT, SRD_T, SRD_T + 3),
                                  's_add_u32 s58, s58, %d' % (512 * 2048)])]
    swz_rd(a, vL, vRdB, 4, 5)
    for r in range(8 * CB): a('v_mov_b32 v%d, 0' % r)
    g.prologue_start(a)
    st.take(a)
    g.run(a)
    st.take(a)
    a('s_mov_b32 s60, 0xffff0000')
    a('s_waitcnt vmcnt(%d)' % nafter)
    sf = opt.get('sflag', '')
    if isC:
        a('s_nop 5')
        for tb in range(2):
            a('v_add_f32 v%d, v%d, v%d' % (SC + 2 * tb, SC + 2 * tb, accb(tb, 4)))
            a('v_mov_b32 v%d, v%d' % (SC + 2 * tb + 1, SC + 2 * tb))
        for i in range(16):
            m = SC + 2 * (i >> 3)
            a('v_lshlrev_b32 v%d, 16, v%d' % (T, RES + i))
            a('v_and_b32 v%d, s60, v%d' % (T + 1, RES + i))
            a('v_pk_add_f32 v[%d:%d], v[%d:%d], v[%d:%d] neg_lo:[0,1] neg_hi:[0,1]' % (T, T + 1, T, T + 1, m, m + 1))
            a('v_pk_add_f32 v[%d:%d], v[%d:%d], v[%d:%d]' % (2 * i, 2 * i + 1, 2 * i, 2 * i + 1, T, T + 1))
        for i in range(16): a('v_cvt_pk_bf16_f32 v%d, v%d, v%d' % (RES + i, 2 * i, 2 * i + 1))
        for tb in range(2):
            for kk in range(2):
                r = RES + 4 * (tb * 2 + kk)
                a('buffer_store_dwordx4 v[%d:%d], v%d, s[%d:%d], 0 offen offset:%d %s' % (r, r + 3, vX, SRD_A, SRD_A + 3, kk * 2048 + tb * 1024, sf))
        for tb in range(2):
            s = T + 2 * tb
            a('v_pk_mul_f32 v[%d:%d], v[%d:%d], v[%d:%d]' % (s, s + 1, 16 * tb, 16 * tb + 1, 16 * tb, 16 * tb + 1))
            for i in range(1, 8):
                r = 16 * tb + 2 * i
                a('v_pk_fma_f32 v[%d:%d], v[%d:%d], v[%d:%d], v[%d:%d]' % (s, s + 1, r, r + 1, r, r + 1, s, s + 1))
            a('v_add_f32 v%d, v%d, v%d' % (s, s, s + 1))
        a('s_lshl_b32 s58, s%d, 13' % S_CT)
        a('s_add_u32 s58, s58, s62')
        a('v_permlane16_swap_b32 v%d, v%d' % (T, T + 2))
        a('v_permlane16_swap_b32 v%d, v%d' % (SC, SC + 2))
        a('v_add_f32 v%d, v%d, v%d' % (T, T, T + 2))
        a('v_mov_b32 v%d, v%d' % (T + 1, T))
        a('v_lshrrev_b32 v0, 5, v%d' % vL)
        a('v_lshlrev_b32 v0, 20, v0')
        a('v_permlane32_swap_b32 v%d, v%d' % (T, T + 1))
        a('v_lshl_add_u32 v0, v%d, 2, v0' % vL)
        a('v_add_f32 v%d, v%d, v%d' % (T, T, T + 1))
        a('buffer_store_dword v%d, v0, s[%d:%d], s58 offen' % (T, SRD_X1, SRD_X1 + 3))
        l = a.newlabel('Lnomh')
        a('s_cmp_lg_u32 s%d, 0' % S_CT)
        a('s_cbranch_scc1 %s' % l)
        a('s_add_u32 s62, s62, %d' % SM_MH)
        a('buffer_store_dword v%d, v0, s[%d:%d], s62 offen' % (SC, SRD_X1, SRD_X1 + 3))
        a.label(l)
    else:
        for j in range(4): a('v_mov_b32 v%d, v%d' % (SC + 2 * j + 1, SC + 2 * j))
        a('s_nop 1')
        for tb in range(2):
            m = SC + 2 * tb; rs = SC + 4 + 2 * tb
            for i in range(8 * tb, 8 * tb + 8):
                a('v_lshlrev_b32 v%d, 16, v%d' % (T, RES + i))
                a('v_and_b32 v%d, s60, v%d' % (T + 1, RES + i))
                a('v_pk_add_f32 v[%d:%d], v[%d:%d], v[%d:%d]' % (T, T + 1, T, T + 1, m, m + 1))
                a('v_pk_fma_f32 v[%d:%d], v[%d:%d], v[%d:%d], v[%d:%d]' % (2 * i, 2 * i + 1, 2 * i, 2 * i + 1, rs, rs + 1, T, T + 1))
            for i in range(8 * tb, 8 * tb + 8): a('v_cvt_pk_bf16_f32 v%d, v%d, v%d' % (RES + i, 2 * i, 2 * i + 1))
            a('s_nop 1')
            for kk in range(2):
                r = RES + 8 * tb + 4 * kk
                a('v_permlane16_swap_b32 v%d, v%d' % (r, r + 2))
                a('v_permlane16_swap_b32 v%d, v%d' % (r + 1, r + 3))
            for kk in range(2):
                r = RES + 8 * tb + 4 * kk
                a('buffer_store_dwordx4 v[%d:%d], v%d, s[%d:%d], %s offen offset:%d %s' % (r, r + 3, vRow, SRD_B, SRD_B + 3, 's61' if tb else '0', 64 * kk, sf))
    if stamp:
        st.take(a)
        a('s_waitcnt vmcnt(0)')
        st.take(a)
        st.flush(a, P_WS, 's2', 0, 'v%d' % vTID)
    a.label(end)
    a('s_endpgm')
    kernel_desc(a, name, 88 + 160, 102, 88)
```

```python
from gemm import *
from kern_small import gu_touch

D_SB = 28672

def d_lds(opt):
    return D_SB * opt.get('U', 4)

def kern_d(a, name, kidx, stamp=False, opt=None):
    opt = opt or {}
    U = opt.get('U', 4); PF = U - 2
    st = Stamps(stamp, kidx)
    kernel_begin(a, name)
    end = a.newlabel('Lend')
    a('s_cmp_ge_u32 s2, 256')
    a('s_cbranch_scc1 %s' % end)
    load_ptrs(a)
    st.take(a)
    S_RB, S_FT, S_T0, S_T1, S_WVO, S_PN, S_ODD = 25, 26, 27, 28, 29, 30, 31
    vTID, vL, vX, vRdB, vD = 224, 225, 226, 227, 230
    vT, vJ = 237, 246
    vA = 238
    T = 248
    AST = 200
    a('v_mov_b32 v%d, v0' % vTID)
    wave_id(a, 1)
    a('v_and_b32 v%d, 63, v0' % vL)
    a('v_lshlrev_b32 v%d, 4, v%d' % (vX, vL))
    if opt.get('map', 0) == 0:
        a('''s_and_b32 s%d, s2, 1
        s_lshl_b32 s%d, s%d, 2
        s_bfe_u32 s%d, s2, 0x20003
        s_add_u32 s%d, s%d, s%d
        s_bfe_u32 s%d, s2, 0x20001
        s_lshl_b32 s%d, s%d, 3
        s_lshr_b32 s%d, s2, 5
        s_add_u32 s%d, s%d, s%d''' % (S_RB, S_RB, S_RB, S_T0, S_RB, S_RB, S_T0, S_FT, S_FT, S_FT, S_T0, S_FT, S_FT, S_T0))
    else:
        a('s_bfe_u32 s%d, s2, 0x30003' % S_RB)
        a('s_and_b32 s%d, s2, 7' % S_FT)
        a('s_lshl_b32 s%d, s%d, 2' % (S_FT, S_FT))
        a('s_lshr_b32 s%d, s2, 6' % S_T0)
        a('s_add_u32 s%d, s%d, s%d' % (S_FT, S_FT, S_T0))
    a('s_and_b32 s%d, s%d, 1' % (S_ODD, S_FT))
    a('s_lshl_b32 s%d, s%d, 3' % (S_PN, S_RB))
    a('s_lshl_b32 s%d, s%d, 1' % (S_T0, S_WAVE))
    a('s_add_u32 s%d, s%d, s%d' % (S_PN, S_PN, S_T0))
    a('s_and_b32 s%d, s%d, 1' % (S_T0, S_WAVE))
    a('s_mul_i32 s%d, s%d, %d' % (S_T1, S_T0, 32 * 7168))
    a('s_lshl_b32 s58, s%d, 1' % S_ODD)
    for i in range(7):
        a('v_add_u32 v2, %d, v%d' % (64 * i, vL))
        a('v_mul_u32_u24 v3, 4682, v2')
        a('v_lshrrev_b32 v3, 16, v3')
        a('v_mul_u32_u24 v4, 14, v3')
        a('v_sub_u32 v2, v2, v4')
        a('v_add_u32 v2, s58, v2')
        a('v_subrev_u32 v4, 14, v2')
        a('v_min_u32 v2, v2, v4')
        a('v_mul_u32_u24 v3, 7168, v3')
        a('v_lshl_add_u32 v3, v2, 4, v3')
        if i & 3:
            a('v_subrev_u32 v3, %d, v3' % (1024 * (i & 3)))
        a('v_add_u32 v%d, s%d, v3' % (vD + i, S_T1))
    a('s_mul_i32 s%d, s%d, 7168' % (S_WVO, S_WAVE))
    a('s_mul_i32 s%d, s%d, 224' % (S_T1, S_FT))
    a('s_lshl_b32 s%d, s%d, 16' % (S_T0, S_PN))
    a('s_add_u32 s%d, s%d, %d' % (S_T0, S_T0, WS_H))
    a('s_waitcnt lgkmcnt(0)')
    a('s_cmp_lt_u32 s%d, 2' % S_WAVE)
    a('s_cselect_b32 s60, s%d, s%d' % (P_WG, P_WU))
    a('s_cselect_b32 s61, s%d, s%d' % (P_WG + 1, P_WU + 1))
    a('s_add_u32 s%d, s60, s%d' % (SRD_W, S_T1))
    a('s_addc_u32 s%d, s61, 0' % (SRD_W + 1))
    a('s_sub_u32 s%d, %d, s%d' % (SRD_W + 2, 1024 * 7168, S_T1))
    a('s_mov_b32 s%d, 0x20000' % (SRD_W + 3))
    srd_off(a, SRD_X0, P_WS, 's%d' % S_T0, 65536)
    a('s_add_u32 s%d, s%d, 65536' % (S_T0, S_T0))
    srd_off(a, SRD_X1, P_WS, 's%d' % S_T0, 65536)

    accb = lambda tb, cb: 4 * (tb * 14 + cb)
    acc = lambda tb, cb: vr(accb(tb, cb), 4)
    xr = lambda slot, ks, tb: ar(32 * slot + 16 * ks + 4 * tb, 4)
    wr = lambda ring: Reg('a', 160 + 4 * ring)
    dma = [('v%d' % (vD + i), (0 if i == 0 else 4096 if i == 4 else None), 1024 * (i & 3)) for i in range(7)]
    g = Gemm(NP=2, CB=14, KS=2, NST=16, U=U, SB=D_SB, PF=PF, D=opt.get('D', 4), RING=7,
             acc=acc, xr=xr, wr=wr, vX='v%d' % vX, dma=dma, wpitch=7168,
             rdoff=lambda s, ks, cb, half: ('v%d' % (vRdB + ((s % U) >> 1)),
                                            ((s % U) & 1) * D_SB + (cb // 7) * 14336 + (ks * 32 + half * 16) * 224 + (cb % 7) * 32),
             wave_off='s%d' % S_WVO, opt=opt)
    g.prologue_init(a)
    g.prologue_stage(a, 0)
    a('''v_lshrrev_b32 v2, 2, v%d
    v_mul_u32_u24 v2, 224, v2
    v_and_b32 v3, 3, v%d
    v_lshl_add_u32 v%d, v3, 3, v2''' % (vL, vL, vRdB))
    a('v_add_u32 v%d, %d, v%d' % (vRdB + 1, 2 * D_SB, vRdB))
    a('v_add_u32 v%d, %d, v%d' % (vRdB + 2, 4 * D_SB, vRdB))
    for r in range(0, 112): a('v_mov_b32 v%d, 0' % r)
    for s in range(1, PF): g.prologue_stage(a, s)
    for r in range(112, 224): a('v_mov_b32 v%d, 0' % r)
    srd_off(a, SRD_A, P_WS, WS_SMALL, SM_BYTES)
    a('s_lshl_b32 s62, s%d, 7' % S_PN)
    a('v_lshl_add_u32 v%d, v%d, 2, s62' % (T, vL))
    late = []
    for ct in range(16):
        late.append((0.0, ['s_mov_b32 s63, %d' % (ct * 8192),
                           'buffer_load_dword a%d, v%d, s[%d:%d], s63 offen' % (AST + ct, T, SRD_A, SRD_A + 3)]))
    g.hooks[16 - PF] = late
    a('v_lshlrev_b32 v%d, 7, v%d' % (vT, vL))
    if opt.get('code'):
        g.hooks[13] = [(0.9, code_touch(a, opt['code'], 'Lcode_end', vT, vJ, 96, 100))]
    if opt.get('wd') is not None:
        a('s_mov_b32 s%d, s%d' % (SRD_T, P_WD))
        a('s_mov_b32 s%d, s%d' % (SRD_T + 1, P_WD + 1))
        a('s_cmp_eq_u32 s%d, 0' % S_WAVE)
        a('s_cselect_b32 s%d, %d, 0' % (SRD_T + 2, 3584 * 2048))
        a('s_mov_b32 s%d, 0x20000' % (SRD_T + 3))
        a('s_lshl_b32 s59, s2, 13')
        tch = ['buffer_load_dword v%d, v%d, s[%d:%d], s59 offen' % (vJ, vT, SRD_T, SRD_T + 3), 's_add_u32 s59, s59, %d' % (256 * 8192)]
        g.loop_hooks[opt['wd']] = [(0.9, tch)]
        g.hooks[12] = g.hooks.get(12, []) + [(0.9, tch)]
    g.prologue_start(a)
    st.take(a)
    g.run(a)
    st.take(a)
    a('s_waitcnt vmcnt(0)')
    a('v_accvgpr_read_b32 v%d, a%d' % (T + 2, AST))
    a('v_accvgpr_read_b32 v%d, a%d' % (T + 3, AST + 1))
    for ct in range(2, 16, 2):
        a('v_accvgpr_read_b32 v%d, a%d' % (T + 4, AST + ct))
        a('v_accvgpr_read_b32 v%d, a%d' % (T + 5, AST + ct + 1))
        a('v_pk_add_f32 v[%d:%d], v[%d:%d], v[%d:%d]' % (T + 2, T + 3, T + 2, T + 3, T + 4, T + 5))
    a('v_add_f32 v%d, v%d, v%d' % (T + 2, T + 2, T + 3))
    a('v_mov_b32 v%d, 0x%x' % (T + 3, f2u(1e-5)))
    a('v_fmac_f32 v%d, 0x%x, v%d' % (T + 3, f2u(1.0 / 1024), T + 2))
    a('v_rsq_f32 v%d, v%d' % (T + 3, T + 3))
    a('v_and_b32 v%d, 15, v%d' % (T + 4, vL))
    a('v_lshlrev_b32 v%d, 2, v%d' % (T + 4, T + 4))
    a('v_mul_f32 v%d, 0x%x, v%d' % (T + 2, f2u(-LOG2E), T + 3))
    for tb in range(4):
        a('ds_bpermute_b32 v%d, v%d, v%d offset:%d' % (vA + 2 * tb, T + 4, T + 2, 64 * tb))
    l = a.newlabel('Lnors')
    a('s_cmp_lg_u32 s%d, 0' % S_FT)
    a('s_cbranch_scc1 %s' % l)
    a('s_mov_b32 s63, %d' % SM_RSTD)
    a('buffer_store_dword v%d, v%d, s[%d:%d], s63 offen' % (T + 3, T, SRD_A, SRD_A + 3))
    a.label(l)
    a('s_mul_i32 s%d, s%d, %d' % (S_T0, S_PN, 224 * 1024))
    a('s_add_u32 s%d, s%d, %d' % (S_T0, S_T0, WS_HH))
    srd_off(a, SRD_B, P_WS, 's%d' % S_T0, 2 * 224 * 1024)
    a('s_mul_i32 s58, s%d, 7' % S_FT)
    a('s_add_u32 s58, s58, s%d' % S_ODD)
    a('s_lshl_b32 s58, s58, 10')
    a('s_mul_i32 s59, s%d, %d' % (S_ODD, 8 * 1024 - 8))
    a('s_sub_u32 s59, s58, s59')
    a('s_add_u32 s59, s59, %d' % (6 * 1024))
    a('s_mov_b32 s60, 1.0')
    a('s_mov_b32 s61, 1.0')
    a('s_waitcnt lgkmcnt(0)')
    sf = opt.get('sflag', '')
    for tb in range(4):
        p, t = divmod(tb, 2)
        a('v_mov_b32 v%d, v%d' % (vA + 2 * tb + 1, vA + 2 * tb))
        for pr in range(4):
            n = 8 if pr < 3 else 4
            b = accb(tb, 2 * pr); u = accb(tb, 7 + 2 * pr)
            for r in range(0, n, 2): a('v_pk_mul_f32 v[%d:%d], v[%d:%d], v[%d:%d]' % (b + r, b + r + 1, b + r, b + r + 1, vA + 2 * tb, vA + 2 * tb + 1))
            for r in range(n): a('v_exp_f32 v%d, v%d' % (b + r, b + r))
            for r in range(0, n, 2): a('v_pk_add_f32 v[%d:%d], v[%d:%d], s[60:61]' % (b + r, b + r + 1, b + r, b + r + 1))
            for r in range(n): a('v_rcp_f32 v%d, v%d' % (b + r, b + r))
            for r in range(0, n, 2): a('v_pk_mul_f32 v[%d:%d], v[%d:%d], v[%d:%d]' % (b + r, b + r + 1, b + r, b + r + 1, u + r, u + r + 1))
            for r in range(n // 2): a('v_cvt_pk_bf16_f32 v%d, v%d, v%d' % (u + r, b + 2 * r, b + 2 * r + 1))
            if pr < 3:
                a('s_add_u32 s%d, s58, %d' % (S_T1, p * 224 * 1024 + pr * 2048))
                a('buffer_store_dwordx4 v[%d:%d], v%d, s[%d:%d], s%d offen offset:%d %s' % (u, u + 3, vX, SRD_B, SRD_B + 3, S_T1, 1024 * t, sf))
            else:
                a('s_add_u32 s%d, s59, %d' % (S_T1, p * 224 * 1024))
                a('buffer_store_dwordx2 v[%d:%d], v%d, s[%d:%d], s%d offen offset:%d' % (u, u + 1, vX, SRD_B, SRD_B + 3, S_T1, 1024 * t))
    if stamp:
        st.take(a)
        a('s_waitcnt vmcnt(0)')
        st.take(a)
        st.flush(a, P_WS, 's2', 0, 'v%d' % vTID)
    a.label(end)
    a('s_endpgm')
    kernel_desc(a, name, 256 + 216, 102, 256)
```

```python
from gemm import *
KVP_REC = 4224

def wave_allsum(a, regs, tmp):
    for ror in (8, 4, 2, 1):
        a('s_nop 1')
        for r in regs: a('v_add_f32_dpp v%d, v%d, v%d row_ror:%d row_mask:0xf bank_mask:0xf' % (r, r, r, ror))
    for sw in ('v_permlane16_swap_b32', 'v_permlane32_swap_b32'):
        for i, r in enumerate(regs): a('v_mov_b32 v%d, v%d' % (tmp + i, r))
        a('s_nop 1')
        for i, r in enumerate(regs): a('%s v%d, v%d' % (sw, r, tmp + i))
        for i, r in enumerate(regs): a('v_add_f32 v%d, v%d, v%d' % (r, r, tmp + i))

def gu_touch(a, rounds, vT, vdst, st0, st1):
    r0 = rounds[0]; n = len([r for r in rounds if r is not None])
    assert list(rounds[:n]) == list(range(r0, r0 + n))
    a('s_bitcmp1_b32 s2, 0')
    a('s_cselect_b32 s%d, s%d, s%d' % (SRD_T, P_WU, P_WG))
    a('s_cselect_b32 s%d, s%d, s%d' % (SRD_T + 1, P_WU + 1, P_WG + 1))
    a('s_cmp_lt_u32 s%d, %d' % (S_WAVE, n))
    a('s_cselect_b32 s%d, %d, 0' % (SRD_T + 2, 1024 * 7168))
    a('s_mov_b32 s%d, 0x20000' % (SRD_T + 3))
    a('s_add_u32 s%d, s%d, %d' % (st0, S_WAVE, r0))
    a('s_lshl_b32 s%d, s%d, 7' % (st0, st0))
    a('s_lshr_b32 s%d, s2, 1' % st1)
    a('s_add_u32 s%d, s%d, s%d' % (st0, st0, st1))
    a('s_lshl_b32 s%d, s%d, 13' % (st0, st0))
    return 'buffer_load_dword v%d, v%d, s[%d:%d], s%d offen' % (vdst, vT, SRD_T, SRD_T + 3, st0)

def kern_k0(a, name, kidx, stamp=False, opt=None):
    opt = opt or {}
    st = Stamps(stamp, kidx)
    kernel_begin(a, name)
    end = a.newlabel('Lend')
    a('s_cmp_ge_u32 s2, 256')
    a('s_cbranch_scc1 %s' % end)
    load_ptrs(a)
    st.take(a)
    wave_id(a, 1)
    a('v_and_b32 v1, 63, v0')
    a('s_mov_b32 s60, 0xffff0000')
    a('v_lshrrev_b32 v2, 1, v1')
    a('v_lshlrev_b32 v2, 6, v2')
    a('v_and_b32 v3, 1, v1')
    a('v_lshl_add_u32 v2, v3, 4, v2')
    a('v_lshlrev_b32 v73, 4, v1')
    a('v_lshrrev_b32 v3, 2, v1')
    a('v_mul_u32_u24 v3, 6144, v3')
    a('v_and_b32 v4, 3, v1')
    a('v_lshl_add_u32 v74, v4, 7, v3')
    a('s_lshr_b32 s28, s2, 3')
    a('s_mul_i32 s28, s28, %d' % (32 * 6144))
    a('s_bfe_u32 s29, s2, 0x20001')
    a('s_lshl_b32 s29, s29, 9')
    a('s_add_u32 s28, s28, s29')
    a('s_lshl_b32 s29, s%d, 11' % S_WAVE)
    a('s_add_u32 s28, s28, s29')
    a('s_add_u32 s29, s28, %d' % (16 * 6144))
    a('s_lshl_b32 s25, s2, 14')
    a('s_lshl_b32 s26, s%d, 12' % S_WAVE)
    a('s_add_u32 s25, s25, s26')
    a('s_lshr_b32 s27, s25, 1')
    a('s_waitcnt lgkmcnt(0)')
    srd_off(a, SRD_A, P_X, 's25', 4096)
    for r in range(2):
        for j in range(2):
            d = 8 + 8 * r + 4 * j
            a('buffer_load_dwordx4 v[%d:%d], v2, s[%d:%d], 0 offen offset:%d' % (d, d + 3, SRD_A, SRD_A + 3, 2048 * r + 32 * j))
    srd_off(a, SRD_W, P_WO, 's27', 2048)
    a('buffer_load_dwordx4 v[64:67], v73, s[%d:%d], 0 offen' % (SRD_W, SRD_W + 3))
    a('buffer_load_dwordx4 v[68:71], v73, s[%d:%d], 0 offen offset:1024' % (SRD_W, SRD_W + 3))
    a('s_mov_b32 s%d, s%d' % (SRD_T, P_WQKV))
    a('s_mov_b32 s%d, s%d' % (SRD_T + 1, P_WQKV + 1))
    a('s_cmp_lt_u32 s%d, %d' % (S_WAVE, 0 if opt.get('notouch') else 3))
    a('s_cselect_b32 s%d, %d, 0' % (SRD_T + 2, 1024 * 6144))
    a('s_mov_b32 s%d, 0x20000' % (SRD_T + 3))
    a('buffer_load_dword v72, v74, s[%d:%d], s28 offen %s' % (SRD_T, SRD_T + 3, opt.get('tflag', '')))
    a('buffer_load_dword v72, v74, s[%d:%d], s29 offen %s' % (SRD_T, SRD_T + 3, opt.get('tflag', '')))
    a('s_lshr_b32 s25, s2, 2')
    a('s_lshl_b32 s25, s25, 16')
    a('s_bfe_u32 s26, s2, 0x10001')
    a('s_lshl_b32 s26, s26, 10')
    a('s_add_u32 s25, s25, s26')
    a('s_and_b32 s26, s2, 1')
    a('s_lshl_b32 s26, s26, 7')
    a('s_add_u32 s25, s25, s26')
    srd_off(a, SRD_B, P_WS, 's25', 31 * 2048 + 3 * 256 + 128)
    srd_off(a, SRD_X0, P_WS, WS_SMALL, SM_BYTES)
    a('s_lshl_b32 s26, s%d, 1' % S_WAVE)
    a('v_and_b32 v3, 7, v1')
    a('v_xor_b32 v3, s26, v3')
    a('v_lshlrev_b32 v3, 4, v3')
    a('v_lshl_add_u32 v4, v1, 8, v3')
    a('v_xor_b32 v5, 16, v4')
    a('v_lshlrev_b32 v6, 4, v0')
    a('v_bfe_u32 v3, v0, 4, 3')
    a('v_xor_b32 v3, v3, v0')
    a('v_and_b32 v3, 7, v3')
    a('v_lshlrev_b32 v3, 4, v3')
    a('v_bfe_u32 v7, v0, 3, 2')
    a('v_lshl_add_u32 v3, v7, 8, v3')
    a('v_lshrrev_b32 v7, 5, v0')
    a('v_lshl_add_u32 v7, v7, 11, v3')
    a('v_lshlrev_b32 v75, 20, v1')
    a('s_lshl_b32 s25, s2, 5')
    a('s_lshl_b32 s26, s%d, 3' % S_WAVE)
    a('s_add_u32 s25, s25, s26')
    a('s_add_u32 s25, s25, %d' % SM_MX)
    a('s_lshr_b32 s26, s2, 3')
    a('s_lshl_b32 s26, s26, 6')
    a('s_and_b32 s27, s2, 3')
    a('s_lshl_b32 s27, s27, 4')
    a('s_add_u32 s26, s26, s27')
    a('s_bfe_u32 s27, s2, 0x10002')
    a('s_lshl_b32 s27, s27, 3')
    a('s_add_u32 s26, s26, s27')
    a('s_lshl_b32 s27, s%d, 1' % S_WAVE)
    a('s_add_u32 s26, s26, s27')
    a('s_add_u32 s30, s26, %d' % SM_WBAR)
    a('s_waitcnt vmcnt(4)')
    for i in range(16):
        a('v_lshlrev_b32 v%d, 16, v%d' % (32 + 2 * i, 8 + i))
        a('v_and_b32 v%d, s60, v%d' % (33 + 2 * i, 8 + i))
    for r in range(2):
        s = 24 + 2 * r; b = 32 + 16 * r
        a('v_pk_add_f32 v[%d:%d], v[%d:%d], v[%d:%d]' % (s, s + 1, b, b + 1, b + 2, b + 3))
        for i in range(2, 8): a('v_pk_add_f32 v[%d:%d], v[%d:%d], v[%d:%d]' % (s, s + 1, s, s + 1, b + 2 * i, b + 2 * i + 1))
        a('v_add_f32 v%d, v%d, v%d' % (s, s, s + 1))
    wave_allsum(a, [24, 26], 28)
    a('v_mul_f32 v76, 0x%x, v24' % f2u(1.0 / 1024))
    a('v_mul_f32 v77, 0x%x, v26' % f2u(1.0 / 1024))
    for r in range(2):
        s = 24 + 2 * r; b = 32 + 16 * r
        a('v_mul_f32 v%d, 0x%x, v%d' % (s, f2u(-1.0 / 1024), s))
        a('v_mov_b32 v%d, v%d' % (s + 1, s))
        for i in range(8): a('v_pk_add_f32 v[%d:%d], v[%d:%d], v[%d:%d]' % (b + 2 * i, b + 2 * i + 1, b + 2 * i, b + 2 * i + 1, s, s + 1))
        a('v_pk_mul_f32 v[%d:%d], v[%d:%d], v[%d:%d]' % (s, s + 1, b, b + 1, b, b + 1))
        for i in range(1, 8): a('v_pk_fma_f32 v[%d:%d], v[%d:%d], v[%d:%d], v[%d:%d]' % (s, s + 1, b + 2 * i, b + 2 * i + 1, b + 2 * i, b + 2 * i + 1, s, s + 1))
        a('v_add_f32 v%d, v%d, v%d' % (s, s, s + 1))
    wave_allsum(a, [24, 26], 28)
    for r in range(2):
        s = 24 + 2 * r
        a('v_mov_b32 v%d, 0x%x' % (s + 1, f2u(1e-5)))
        a('v_fmac_f32 v%d, 0x%x, v%d' % (s + 1, f2u(1.0 / 1024), s))
        a('v_rsq_f32 v%d, v%d' % (s, s + 1))
    a('s_nop 0')
    for r in range(2):
        s = 24 + 2 * r; b = 32 + 16 * r
        a('v_mov_b32 v%d, v%d' % (s + 1, s))
        for i in range(8): a('v_pk_mul_f32 v[%d:%d], v[%d:%d], v[%d:%d]' % (b + 2 * i, b + 2 * i + 1, b + 2 * i, b + 2 * i + 1, s, s + 1))
        for e in range(2):
            for j in range(2):
                for q in range(2):
                    src = b + 8 * j + 4 * e + 2 * q
                    a('v_cvt_pk_bf16_f32 v%d, v%d, v%d' % (8 + 8 * r + 4 * e + 2 * j + q, src, src + 1))
        for e in range(2):
            d = 8 + 8 * r + 4 * e
            a('ds_write_b128 v%d, v[%d:%d] offset:%d' % (4 + r, d, d + 3, 128 * e))
    a('s_waitcnt lgkmcnt(0)')
    a('s_barrier')
    for i in range(4): a('ds_read_b128 v[%d:%d], v6 offset:%d' % (32 + 4 * i, 35 + 4 * i, 4096 * i))
    a('s_waitcnt vmcnt(2)')
    a('v_lshlrev_b32 v24, 16, v64')
    a('v_and_b32 v25, s60, v64')
    for i in range(1, 8):
        a('v_lshlrev_b32 v26, 16, v%d' % (64 + i))
        a('v_and_b32 v27, s60, v%d' % (64 + i))
        a('v_pk_add_f32 v[24:25], v[24:25], v[26:27]')
    a('v_add_f32 v24, v24, v25')
    for i in range(4):
        a('s_mov_b32 s26, %d' % (16384 * i))
        a('s_waitcnt lgkmcnt(%d)' % (3 - i))
        a('buffer_store_dwordx4 v[%d:%d], v7, s[%d:%d], s26 offen %s' % (32 + 4 * i, 35 + 4 * i, SRD_B, SRD_B + 3, opt.get('sflag', '')))
    a('buffer_store_dwordx2 v[76:77], v75, s[%d:%d], s25 offen' % (SRD_X0, SRD_X0 + 3))
    wave_allsum(a, [24], 28)
    a('v_mul_f32 v24, 0x%x, v24' % f2u(1.0 / 1024))
    a('v_cvt_pk_bf16_f32 v24, v24, v24')
    a('buffer_store_short v24, v75, s[%d:%d], s30 offen' % (SRD_X0, SRD_X0 + 3))
    if stamp:
        a('s_waitcnt vmcnt(0)')
        for _ in range(4): st.take(a)
        st.flush(a, P_WS, 's2', 2, 'v0')
    a.label(end)
    a('s_endpgm')
    kernel_desc(a, name, 80, 102, 80)

def kern_b(a, name, kidx, stamp=False, opt=None):
    opt = opt or {}
    st = Stamps(stamp, kidx)
    kernel_begin(a, name)
    end = a.newlabel('Lend')
    a('s_cmp_ge_u32 s2, 256')
    a('s_cbranch_scc1 %s' % end)
    load_ptrs(a)
    st.take(a)
    wave_id(a, 1)
    a('v_and_b32 v1, 63, v0')
    a('v_lshlrev_b32 v2, 4, v0')
    a('v_lshlrev_b32 v3, 4, v1')
    a('s_and_b32 s25, s2, 7')
    a('s_lshl_b32 s25, s25, 2')
    a('s_lshr_b32 s26, s2, 6')
    a('s_add_u32 s25, s25, s26')
    a('s_bfe_u32 s26, s2, 0x30003')
    a('s_mul_i32 s27, s25, %d' % (16 * KVP_REC))
    a('s_add_u32 s27, s27, %d' % WS_KVP)
    a('s_lshl_b32 s28, s26, 3')
    a('s_lshl_b32 s29, s%d, 1' % S_WAVE)
    a('s_add_u32 s28, s28, s29')
    a('s_lshl_b32 s28, s28, 16')
    a('s_lshl_b32 s29, s25, 11')
    a('s_add_u32 s28, s28, s29')
    a('s_add_u32 s29, s28, %d' % WS_PQ)
    a('s_add_u32 s28, s28, %d' % WS_O)
    a('v_lshrrev_b32 v4, 3, v1')
    a('v_mul_u32_u24 v4, %d, v4' % KVP_REC)
    a('v_and_b32 v5, 7, v1')
    a('v_lshl_add_u32 v4, v5, 4, v4')
    a('s_waitcnt lgkmcnt(0)')
    srd_off(a, SRD_A, P_WS, 's27', 16 * KVP_REC)
    srd_off(a, SRD_X0, P_WS, 's29', 65536 + 2048)
    srd_off(a, SRD_B, P_WS, 's28', 65536 + 2048)
    for p in range(16):
        a('s_mov_b32 s30, %d' % (p * KVP_REC))
        a('buffer_load_dwordx4 v[%d:%d], v2, s[%d:%d], s30 offen' % (16 + 4 * p, 19 + 4 * p, SRD_A, SRD_A + 3))
    a('s_mov_b32 s30, 4096')
    a('buffer_load_dwordx4 v[8:11], v4, s[%d:%d], s30 offen' % (SRD_A, SRD_A + 3))
    a('s_mov_b32 s30, %d' % (4096 + 8 * KVP_REC))
    a('buffer_load_dwordx4 v[12:15], v4, s[%d:%d], s30 offen' % (SRD_A, SRD_A + 3))
    a('s_mov_b32 s30, 65536')
    for tb in range(4):
        a('buffer_load_dwordx4 v[%d:%d], v3, s[%d:%d], %s offen offset:%d' % (80 + 4 * tb, 83 + 4 * tb, SRD_X0, SRD_X0 + 3, 's30' if tb >> 1 else '0', 1024 * (tb & 1)))
    a('v_lshrrev_b32 v5, 3, v1')
    a('v_lshlrev_b32 v5, 11, v5')
    a('v_and_b32 v6, 7, v1')
    a('v_lshl_add_u32 v97, v6, 7, v5')
    a('s_lshr_b32 s31, s2, 3')
    a('s_lshl_b32 s31, s31, 2')
    a('s_add_u32 s31, s31, s%d' % S_WAVE)
    a('s_lshl_b32 s31, s31, 14')
    a('s_and_b32 s58, s2, 1')
    a('s_lshl_b32 s58, s58, 10')
    a('s_add_u32 s31, s31, s58')
    srd(a, SRD_W, 's%d' % P_WO, 's%d' % (P_WO + 1), 0 if opt.get('notouch') else 1024 * 2048)
    a('buffer_load_dword v96, v97, s[%d:%d], s31 offen' % (SRD_W, SRD_W + 3))
    nt = 1
    if opt.get('gu'):
        a('v_lshlrev_b32 v98, 7, v1')
        a(gu_touch(a, opt['gu'], 98, 96, 58, 59)); nt = 2
    a('s_and_b32 s31, s%d, 1' % S_WAVE)
    a('s_lshl_b32 s31, s31, 10')
    a('s_lshr_b32 s58, s%d, 1' % S_WAVE)
    a('s_lshl_b32 s58, s58, 3')
    a('s_add_u32 s31, s31, s58')
    a('v_add_u32 v6, s31, v3')
    a('v_and_b32 v7, 3, v1')
    a('v_lshlrev_b32 v7, 4, v7')
    a('v_bfe_u32 v5, v1, 2, 1')
    a('v_lshl_add_u32 v7, v5, 3, v7')
    for p in range(1, 16):
        a('s_waitcnt vmcnt(%d)' % (21 + nt - p))
        a('v_pk_add_f32 v[16:17], v[16:17], v[%d:%d]' % (16 + 4 * p, 17 + 4 * p))
        a('v_pk_add_f32 v[18:19], v[18:19], v[%d:%d]' % (18 + 4 * p, 19 + 4 * p))
    a('v_cvt_pk_bf16_f32 v16, v16, v17')
    a('v_cvt_pk_bf16_f32 v17, v18, v19')
    a('ds_write_b64 v6, v[16:17]')
    a('s_waitcnt vmcnt(%d)' % (4 + nt))
    a('v_pk_add_f32 v[8:9], v[8:9], v[12:13]')
    a('v_pk_add_f32 v[10:11], v[10:11], v[14:15]')
    a('s_nop 1')
    for r in range(8, 12): a('v_add_f32_dpp v%d, v%d, v%d row_ror:8 row_mask:0xf bank_mask:0xf' % (r, r, r))
    for sw in ('v_permlane16_swap_b32', 'v_permlane32_swap_b32'):
        for r in range(4): a('v_mov_b32 v%d, v%d' % (12 + r, 8 + r))
        a('s_nop 1')
        for r in range(4): a('%s v%d, v%d' % (sw, 8 + r, 12 + r))
        for r in range(4): a('v_add_f32 v%d, v%d, v%d' % (8 + r, 8 + r, 12 + r))
    a('v_cvt_pk_bf16_f32 v8, v8, v9')
    a('v_cvt_pk_bf16_f32 v9, v10, v11')
    a('ds_write_b64 v7, v[8:9] offset:2048')
    a('v_and_b32 v5, 0x30, v1')
    a('s_waitcnt lgkmcnt(0)')
    a('s_barrier')
    a('ds_read_b128 v[16:19], v3')
    a('ds_read_b128 v[20:23], v3 offset:1024')
    a('ds_read_b128 v[24:27], v5 offset:2048')
    a('s_waitcnt vmcnt(%d) lgkmcnt(0)' % nt)
    for tb in range(4):
        for j in range(3):
            d = 32 + 12 * tb + 4 * j
            a('v_mfma_f32_16x16x32_bf16 v[%d:%d], v[%d:%d], v[%d:%d], 0' % (d, d + 3, 16 + 4 * j, 19 + 4 * j, 80 + 4 * tb, 83 + 4 * tb))
    a('s_nop 7')
    for tb in range(4): a('v_add_f32 v%d, 0x%x, v%d' % (40 + 12 * tb, f2u(1e-6), 40 + 12 * tb))
    for tb in range(4): a('v_rcp_f32 v%d, v%d' % (40 + 12 * tb, 40 + 12 * tb))
    for tb in range(4):
        d = 32 + 12 * tb
        a('v_mov_b32 v%d, v%d' % (d + 9, d + 8))
        for r in range(0, 8, 2): a('v_pk_mul_f32 v[%d:%d], v[%d:%d], v[%d:%d]' % (d + r, d + r + 1, d + r, d + r + 1, d + 8, d + 9))
        for r in range(4): a('v_cvt_pk_bf16_f32 v%d, v%d, v%d' % (80 + 4 * tb + r, d + 2 * r, d + 2 * r + 1))
        a('buffer_store_dwordx4 v[%d:%d], v3, s[%d:%d], %s offen offset:%d' % (80 + 4 * tb, 83 + 4 * tb, SRD_B, SRD_B + 3, 's30' if tb >> 1 else '0', 1024 * (tb & 1)))
    if stamp:
        a('s_waitcnt vmcnt(0)')
        for _ in range(4): st.take(a)
        st.flush(a, P_WS, 's2', 2, 'v0')
    a.label(end)
    a('s_endpgm')
    kernel_desc(a, name, 100, 102, 100)
```

```python
import sys, json
from kern_d import *
from kern_ace import *
from kern_small import *
HEADER = open('sequential_preLN__linear_attn_block__glu_gated_glu__prompt.s.ref').read().split('; Override')[0] if __name__ == '__main__' else ''
def gen(path, opt=None, stamp=False, header=''):
    opt = opt or {}
    a = Asm()
    if header: a.raw(header.rstrip('\n'))
    ok, oa, ob, oc, od, oe = (opt.get(k, {}) for k in 'kabcde')
    a.raw('; @launch kernel=ln1_kernel grid=(256,1,1) block=(256,1,1) lds=16384')
    a.raw('; @launch kernel=qkv_kernel grid=(256,1,1) block=(256,1,1) lds=%d' % a_lds(oa))
    a.raw('; @launch kernel=attn_kernel grid=(256,1,1) block=(256,1,1) lds=4096')
    a.raw('; @launch kernel=wo_kernel grid=(256,1,1) block=(256,1,1) lds=%d' % ce_lds(oc))
    a.raw('; @launch kernel=glu_kernel grid=(256,1,1) block=(256,1,1) lds=%d' % d_lds(od))
    a.raw('; @launch kernel=down_kernel grid=(256,1,1) block=(256,1,1) lds=%d' % ce_lds(oe))
    for i in range(opt.get('nop', 0)):
        a.raw('; @launch kernel=nop_kernel grid=(256,1,1) block=(256,1,1) lds=0')
    a.raw('.amdgcn_target "amdgcn-amd-amdhsa--gfx950"')
    kern_k0(a, 'ln1_kernel', 0, stamp, ok)
    kern_a(a, 'qkv_kernel', 1, stamp, oa)
    kern_b(a, 'attn_kernel', 2, stamp, ob)
    kern_ce(a, 'wo_kernel', 3, 'C', stamp, oc)
    kern_d(a, 'glu_kernel', 4, stamp, od)
    kern_ce(a, 'down_kernel', 5, 'E', stamp, oe)
    if opt.get('nop'):
        kernel_begin(a, 'nop_kernel'); a('s_endpgm'); kernel_desc(a, 'nop_kernel', 8, 16, 8)
    open(path, 'w').write(a.text())
BEST = {'a': {'gu': [0, 1, 2, 3]}, 'b': {'gu': [4, 5, 6, None]}, 'd': {'wd': 0}, 'e': {'slow': 1}}
if __name__ == '__main__':
    gen('sequential_preLN__linear_attn_block__glu_gated_glu__prompt.s', BEST, False, HEADER)
```

```python
from asmlib import *

P_X, P_WQKV, P_WO, P_BX, P_WG, P_WU, P_WD, P_OUT, P_DBG, P_WS = 4, 6, 8, 10, 12, 14, 16, 18, 20, 22
S_WAVE = 24
SRD_W, SRD_X0, SRD_X1, SRD_A, SRD_B = 32, 36, 40, 44, 48
S_WOFF, S_XOFF, S_XOFF2, S_CNT = 52, 53, 54, 55
SRD_T = 64

WS_XN, WS_PQ, WS_O, WS_H, WS_HH = 0, 4 << 20, 8 << 20, 12 << 20, 16 << 20
WS_KVP = 32 << 20
WS_SMALL = 36 << 20
SM_ST2, SM_MX, SM_MH, SM_RSTD, SM_WBAR = 0, 256 << 10, 272 << 10, 288 << 10, 304 << 10
SM_BYTES = 320 << 10
LOG2E = 1.4426950408889634

def load_ptrs(a):
    a('s_load_dwordx16 s[4:19], s[0:1], 0')
    a('s_load_dwordx4 s[20:23], s[0:1], 64')

def wave_id(a, vtmp):
    a('v_lshrrev_b32 v%d, 6, v0' % vtmp)
    a('s_nop 0')
    a('v_readfirstlane_b32 s%d, v%d' % (S_WAVE, vtmp))

def code_touch(a, first, last, vT, vdst, srdn, soff, wave=3):
    l = a.newlabel('Lpc')
    a('s_getpc_b64 s[%d:%d]' % (srdn, srdn + 1))
    a.label(l)
    a('s_add_u32 s%d, s%d, %s-%s' % (srdn, srdn, first, l))
    a('s_addc_u32 s%d, s%d, 0' % (srdn + 1, srdn + 1))
    a('s_cmp_eq_u32 s%d, %d' % (S_WAVE, wave))
    a('s_cselect_b32 s%d, %s-%s, 0' % (srdn + 2, last, first))
    a('s_mov_b32 s%d, 0x20000' % (srdn + 3))
    a('s_lshr_b32 s%d, s2, 3' % soff)
    a('s_lshl_b32 s%d, s%d, 13' % (soff, soff))
    return 'buffer_load_dword v%d, v%d, s[%d:%d], s%d offen' % (vdst, vT, srdn, srdn + 3, soff)

def is_vmem(s):
    return s.startswith('buffer_') or s.startswith('global_')

class Gemm:
    def __init__(self, NP, CB, KS, NST, U, SB, PF, D, RING, acc, xr, wr, vX, dma, wpitch, rdoff,
                 wave_off, swap=None, opt=None):
        self.__dict__.update(locals())
        self.TB = 2 * NP
        self.swap = swap or (lambda cb: False)
        self.opt = opt or {}
        self.F = KS * CB
        assert PF <= U - 2 and D < RING and (self.F * U) % RING == 0
        if self.TB == 2: assert D % 2 == 0 and self.F % 2 == 0
        self.vmlog = []
        self.hooks = {}
        self.loop_hooks = {}
        self.first_zero = False

    def vmem_ops(self, slot):
        o = self.opt
        xs = []
        for ks in range(self.KS):
            for tb in range(self.TB):
                p, t = divmod(tb, 2)
                i = 2 * ks + t
                so = S_XOFF if i < 4 else S_XOFF2
                xs.append(([], 'buffer_load_dwordx4 %s, %s, s[%d:%d], s%d offen offset:%d %s' % (
                    self.xr(slot, ks, tb), self.vX, SRD_X0 + 4 * p, SRD_X0 + 4 * p + 3, so, (i & 3) * 1024, o.get('xflag', ''))))
        ds = []
        for (v, m0add, imm) in self.dma:
            pre = [] if m0add is None else ['s_add_u32 m0, %s, %d' % (self.wave_off, m0add + slot * self.SB)]
            ds.append((pre, 'buffer_load_dwordx4 %s, s[%d:%d], s%d offen offset:%d %s lds' % (
                v, SRD_W, SRD_W + 3, S_WOFF, imm, o.get('wflag', ''))))
        if o.get('wfirst'): return ds + xs
        ops = []
        i = j = 0
        while i < len(ds) or j < len(xs):
            if j >= len(xs) or (i < len(ds) and i * len(xs) <= j * len(ds)):
                ops.append(ds[i]); i += 1
            else:
                ops.append(xs[j]); j += 1
        return ops

    def advance(self):
        r = ['s_add_u32 s%d, s%d, %d' % (S_WOFF, S_WOFF, self.KS * 32 * self.wpitch),
             's_add_u32 s%d, s%d, %d' % (S_XOFF, S_XOFF, self.KS * 2048)]
        if self.KS > 2:
            r.append('s_add_u32 s%d, s%d, %d' % (S_XOFF2, S_XOFF2, self.KS * 2048))
        return r

    def reads(self, gf):
        st, f = divmod(gf, self.F)
        ks, cb = divmod(f, self.CB)
        w = self.wr(gf % self.RING)
        r = []
        for half in range(2):
            v, imm = self.rdoff(st, ks, cb, half)
            if v is None: continue
            if imm < 0:
                r.append('ds_read_b128 %s, %s offset:%d' % (w(0, 4), v, -imm - 1))
            else:
                r.append('ds_read_b64_tr_b16 %s, %s offset:%d' % (w(2 * half, 2), v, imm))
        return r

    def note(self, s, tag=None):
        if is_vmem(s): self.vmlog.append(tag)

    def emit(self, a, s, tag=None):
        self.note(s, tag); a(s)

    def younger(self, stage):
        n = 0
        for t in reversed(self.vmlog):
            if t == stage: return n
            n += 1
        raise AssertionError('stage %d never loaded' % stage)

    def prologue_init(self, a, woff='0', xoff=None):
        a('s_mov_b32 s%d, %s' % (S_WOFF, woff))
        if xoff is None:
            a('s_mov_b32 s%d, 0' % S_XOFF)
            if self.KS > 2: a('s_mov_b32 s%d, 4096' % S_XOFF2)
        else:
            a('s_mov_b32 s%d, %s' % (S_XOFF, xoff))
            if self.KS > 2: a('s_add_u32 s%d, %s, 4096' % (S_XOFF2, xoff))

    def prologue_stage(self, a, s):
        for pre, op in self.vmem_ops(s % self.U):
            for p in pre:
                a(p); a('s_nop 0')
            self.emit(a, op, s)
        for i in self.advance(): a(i)

    def prologue_start(self, a):
        a('s_waitcnt vmcnt(%d)' % min(63, self.younger(0)))
        a('s_barrier')
        for gf in range(self.D):
            for r in self.reads(gf): a(r)
        a('s_waitcnt lgkmcnt(%d)' % self.lgk(0, self.D))

    def lgk(self, gf, upto):
        G = 2 if self.TB == 2 else 1
        return min(15, sum(len(self.reads(x)) for x in range(gf + G, upto)))

    def stage(self, a, s, nloaded, last, hooks, loop=None, vmn=None):
        TB, CB, F, D = self.TB, self.CB, self.F, self.D
        u = s % self.U
        nm = F * TB
        gaps = [[] for _ in range(nm)]
        G = 2 if TB == 2 else 1
        ngrp = nm // 4
        endf = F if last else F + D
        bargrp = (F - D) // G - 1
        free = []
        for g in range(ngrp):
            f = g * G
            if TB == 2:
                for j in range(2):
                    if f + j + D < endf: gaps[4 * g + 2 * j] += self.reads(s * F + f + j + D)
            else:
                r = self.reads(s * F + f + D) if f + D < endf else []
                gaps[4 * g] += r[:1]; gaps[4 * g + 2] += r[1:]
            free.append(4 * g + 1)
        ops = [(p, op, s + self.PF) for p, op in self.vmem_ops((s + self.PF) % self.U)] if nloaded else []
        lastg = bargrp if not last else ngrp - 1
        slots = free[:lastg + 1]
        if len(ops) > len(slots):
            slots = sorted(slots + [x + 2 for x in slots[:-1]])
        place = {}
        for i, x in enumerate(ops):
            g = slots[(i * len(slots)) // len(ops)] if len(ops) <= len(slots) else slots[min(len(slots) - 1, (i * len(slots)) // len(ops))]
            place.setdefault(g, []).append(x)
        for fr, ins in hooks:
            cand = [g for g in free if g not in place and g >= fr * nm] or [free[-1]]
            place.setdefault(cand[0], []).append(([], ins, None))
        post = [[] for _ in range(nm)]
        for g in sorted(place):
            for p, op, tag in place[g]:
                if p:
                    if post[g] or g == 0: post[g] += [(x, None) for x in p] + [('s_nop 0', None)]
                    else: post[g - 1] += [(x, None) for x in p]
                for x in (op if isinstance(op, list) else [op]): post[g].append((x, tag))
        if ops:
            lastv = max(g for g in place if any(t is not None for _, _, t in place[g]))
            adv = self.advance()
            g = lastv + 1
            for x in adv:
                while g < nm - 1 and (len(gaps[g]) + len(post[g]) >= 2 or any(is_vmem(y) for y, _ in post[g]) or g == 4 * bargrp + 3): g += 1
                post[g].append((x, None))
        if loop:
            post[nm - 3].append(('s_sub_u32 s%d, s%d, 1' % (S_CNT, S_CNT), None))
            post[nm - 3].append(('s_cmp_lg_u32 s%d, 0' % S_CNT, None))
            for g in (nm - 2, nm - 1): assert not any(y.startswith('s_add') for y, _ in post[g])
        j = 0
        res = None
        for f in range(F):
            ks, cb = divmod(f, CB)
            w = self.wr((s * F + f) % self.RING)
            for tb in range(TB):
                A, B = w(0, 4), self.xr(u, ks, tb)
                if self.swap(cb): A, B = B, A
                c = self.acc(tb, cb)
                cin = '0' if (self.first_zero and s == 0 and ks == 0) else c
                if not self.opt.get('no_mfma'):
                    a('v_mfma_f32_16x16x32_bf16 %s, %s, %s, %s' % (c, A, B, cin))
                for x in gaps[j]:
                    if not self.opt.get('no_rd'): a(x)
                for x, tag in post[j]: self.emit(a, x, tag)
                if j % 4 == 3:
                    g = j // 4
                    nf = (g + 1) * G
                    if nf < F or not last:
                        w8 = 'lgkmcnt(%d)' % self.lgk(s * F + nf, s * F + min(endf, nf + D))
                        if g == bargrp and not last:
                            res = self.younger(s + 1)
                            a('s_waitcnt vmcnt(%d) %s' % (min(63, res if vmn is None else min(vmn, res)), w8))
                            a('s_barrier')
                        else:
                            a('s_waitcnt %s' % w8)
                j += 1
        if loop: a('s_cbranch_scc1 %s' % loop)
        return res

    def run(self, a, ntail=None, nhead=0):
        U, NST = self.U, self.NST
        assert nhead % U == 0
        if ntail is None:
            ntail = self.PF + (NST - nhead - self.PF) % U
        nloop = (NST - nhead - ntail) // U
        assert nhead + nloop * U + ntail == NST and ntail >= self.PF
        s = 0
        for s in range(nhead):
            self.stage(a, s, True, False, self.hooks.get(s, []))
        s = nhead
        if nloop == 1:
            for u in range(U): self.stage(a, s + u, True, False, self.hooks.get(s + u, []) + self.loop_hooks.get(u, []))
        elif nloop > 1:
            assert not (self.first_zero and nhead == 0)
            save = list(self.vmlog)
            d = Asm(); n1 = [self.stage(d, s + u, True, False, self.loop_hooks.get(u, [])) for u in range(U)]
            n2 = [self.stage(d, s + U + u, True, False, self.loop_hooks.get(u, [])) for u in range(U)]
            self.vmlog = save
            a('s_mov_b32 s%d, %d' % (S_CNT, nloop))
            lab = a.newlabel('Lmain')
            if self.opt.get('align'): a.raw('.p2align %d' % self.opt['align'])
            a.label(lab)
            for u in range(U):
                self.stage(a, s + u, True, False, self.loop_hooks.get(u, []), loop=lab if u == U - 1 else None, vmn=min(n1[u], n2[u]))
            sh = (nloop - 1) * U
            self.vmlog = [None if t is None else t + sh for t in self.vmlog]
        s = nhead + nloop * U
        for t in range(s, NST):
            self.stage(a, t, t + self.PF < NST, t == NST - 1, self.hooks.get(t, []))
```

```python
from gemm import *
from kern_small import wave_allsum, gu_touch

WS_ST1 = 40 << 20
WS_CS1 = WS_ST1 + (256 << 10)
WS_KVA = WS_ST1 + (512 << 10)
KVA_REC = 8704
A2_BYTES = 1 << 20
A2_LDS = 163840
R = 16384
EXCH = 8 * R

class Stream:
    def __init__(self, a):
        self.a = a; self.lds = []; self.vm = []
    def __call__(self, s, tag=None):
        for l in s.strip().split('\n'):
            l = l.strip()
            if l.startswith('ds_'): self.lds.append(tag)
            elif is_vmem(l): self.vm.append(tag)
            self.a(l)
    def _n(self, log, tags):
        n = 0
        for t in reversed(log):
            if t in tags: return n
            n += 1
        return None
    def wait(self, lds=(), vm=(), force=False):
        p = []
        n = self._n(self.vm, vm)
        if n is not None:
            n = min(n, 63); p.append('vmcnt(%d)' % n); self.vm = self.vm[len(self.vm) - n:]
        n = self._n(self.lds, lds)
        if n is not None:
            n = min(n, 15); p.append('lgkmcnt(%d)' % n); self.lds = self.lds[len(self.lds) - n:]
        if p: self.a('s_waitcnt ' + ' '.join(p))
    def wait_all(self, lds=False, vm=False):
        p = []
        if vm: p.append('vmcnt(0)'); self.vm = []
        if lds: p.append('lgkmcnt(0)'); self.lds = []
        self.a('s_waitcnt ' + ' '.join(p))

TRANS = ('v_exp', 'v_rcp', 'v_rsq', 'v_log', 'v_sqrt')
class Fill:
    def __init__(self, e):
        self.e = e; self.q = []
    def add(self, items, nb=0):
        for x in items:
            if not isinstance(x, tuple): x = (x, None)
            self.q.append((x[0], x[1], nb))
    @staticmethod
    def kind(x):
        if callable(x) or x.startswith('s_'): return 's', 1
        if x.startswith('ds_'): return 'l', (2 if 'b128' in x else 1)
        if is_vmem(x): return 'm', 2
        return 'v', (2 if x.startswith(TRANS) or x.startswith('v_pk') else 1)
    def _emit(self):
        x, t, _ = self.q.pop(0)
        if callable(x): x()
        else: self.e(x, t)
    def pre(self, idx):
        if self.q and self.q[0][2] <= idx and self.kind(self.q[0][0])[0] == 's': self._emit()
    def post(self, idx, used, cap=2):
        valu = False
        while self.q and self.q[0][2] <= idx:
            k, c = self.kind(self.q[0][0])
            if used + c > cap: break
            if k in 'lm' and valu: break
            if k == 's' and used: break
            valu |= k == 'v'
            used += c
            self._emit()
    def flush(self):
        while self.q: self._emit()

def weave(e, main, side, every):
    side = list(side)
    for i, x in enumerate(main):
        e(x)
        if side and i % every == every - 1:
            for y, t in side.pop(0): e(y, t)
    for it in side:
        for y, t in it: e(y, t)

def pk(op, d, x, y, z=None, mod=''):
    f = lambda r: r if isinstance(r, str) else 'v[%d:%d]' % (r, r + 1)
    return 'v_pk_%s_f32 %s, %s, %s%s %s' % (op, f(d), f(x), f(y), '' if z is None else ', ' + f(z), mod)

def bc(reg, pos, nsrc):
    lo = [0] * nsrc; hi = [1] * nsrc
    lo[pos] = hi[pos] = reg & 1
    return reg & ~1, 'op_sel:[%s] op_sel_hi:[%s]' % (','.join(map(str, lo)), ','.join(map(str, hi)))

def allsum4(regs, tmp):
    o = []
    for sw in ('v_permlane16_swap_b32', 'v_permlane32_swap_b32'):
        o += ['v_mov_b32 v%d, v%d' % (tmp + i, r) for i, r in enumerate(regs)]
        o.append('s_nop 1')
        o += ['%s v%d, v%d' % (sw, r, tmp + i) for i, r in enumerate(regs)]
        o += ['v_add_f32 v%d, v%d, v%d' % (r, r, tmp + i) for i, r in enumerate(regs)]
    return o

def unpk(lst):
    import re
    o = []
    for x in lst:
        if isinstance(x, str) and x.startswith('v_pk_'):
            op = x.split()[0][5:8]
            regs = re.findall(r'([vs])\[(\d+):\d+\]', x)
            n = len(regs) - 1
            lo = re.search(r'op_sel:\[([\d,]+)\]', x); hi = re.search(r'op_sel_hi:\[([\d,]+)\]', x)
            lo = list(map(int, lo.group(1).split(','))) if lo else [0] * n
            hi = list(map(int, hi.group(1).split(','))) if hi else [1] * n
            for h, sel in enumerate((lo, hi)):
                src = ['%s%d' % (f, int(r) + sel[i]) for i, (f, r) in enumerate(regs[1:])]
                if op != 'fma' and src[1][0] == 's': src = src[::-1]
                o.append('v_%s_f32 v%d, %s' % (op, int(regs[0][1]) + h, ', '.join(src)))
        else: o.append(x)
    return o

def phi8(regs, tmp, rl, rs, sOne, sE):
    n = len(regs); o = []
    for i, r in enumerate(regs):
        x, md = rl(i, 2); o.append(pk('mul', tmp + 2 * i, r, x, None, md))
    o += ['v_exp_f32 v%d, v%d clamp' % (tmp + i, tmp + i) for i in range(2 * n)]
    for i, r in enumerate(regs):
        x, md = rs(i, 3); o.append(pk('fma', r, r, x, 's[%d:%d]' % (sOne, sOne + 1), md))
    for i, r in enumerate(regs): o += ['v_max_f32 v%d, v%d, v%d' % (r + h, r + h, tmp + 2 * i + h) for h in range(2)]
    o += [pk('add', r, r, 's[%d:%d]' % (sE, sE + 1)) for r in regs]
    return o

def phi_tail(regs, tmp, sE):
    n = len(regs); o = []
    o += ['v_min_f32 v%d, 0, v%d' % (tmp + i, tmp + i) for i in range(2 * n)]
    o += ['v_exp_f32 v%d, v%d' % (tmp + i, tmp + i) for i in range(2 * n)]
    for r in regs: o += ['v_max_f32 v%d, 0, v%d' % (r, r), 'v_max_f32 v%d, 0, v%d' % (r + 1, r + 1)]
    o += [pk('add', r, r, tmp + 2 * i) for i, r in enumerate(regs)]
    o += [pk('add', r, r, 's[%d:%d]' % (sE, sE + 1)) for r in regs]
    return o

def spin(a, e, load, vreg, want, scnt):
    ok = a.newlabel('Lok'); lp = a.newlabel('Lspin')
    a('v_cmp_ne_u32 vcc, %s, v%d' % (want, vreg))
    a('s_mov_b32 s%d, 0x80000' % scnt)
    a('s_cmp_eq_u64 vcc, 0')
    a('s_cbranch_scc1 %s' % ok)
    a.label(lp)
    a(load)
    a('s_waitcnt vmcnt(0)')
    a('v_cmp_ne_u32 vcc, %s, v%d' % (want, vreg))
    a('s_sub_u32 s%d, s%d, 1' % (scnt, scnt))
    a('s_cbranch_scc1 %s' % ok)
    a('s_cmp_lg_u64 vcc, 0')
    a('s_cbranch_scc1 %s' % lp)
    a.label(ok)

def kern_a2(a, name, kidx, stamp=False, opt=None):
    opt = opt or {}
    st = Stamps(stamp, kidx)
    e = Stream(a)
    marks = opt.get('marks', ['land0', 'p1end', 'p2start', 'p2end'])
    def mark(x):
        if x in marks: st.take(a)
    kernel_begin(a, name)
    end = a.newlabel('Lend')
    a('s_cmp_ge_u32 s2, 256')
    a('s_cbranch_scc1 %s' % end)
    load_ptrs(a)
    st.take(a)
    S_RB, S_HP, S_T0, S_T1, S_WV, S_PN, S_SL = 25, 26, 27, 28, 29, 30, 31
    SRD_KV, SRD_X, SRD_Q, SRD_S, SRD_O, SRD_D = 32, 36, 40, 44, 48, 56
    S_QOFF, S_QSL, S_KVA = 54, 55, 3
    S_E, S_M = 60, 62
    WR = 64
    vTID, vL, vX16, vW, vXs, vRd, vXR = 96, 97, 98, 100, 102, 106, 114
    vT, vJ, vP, vPA = 116, 117, 118, 119
    MEA, RSA, RLA = 120, 128, 136
    MEB, RSB, RLB = 144, 146, 148
    CSK, CSQ = 152, 160
    G1, G2 = 176, 192
    T = 208
    acc = lambda tb, cb: 4 * (cb * 2 + tb)
    accq = lambda tb, cb: 4 * (tb * 4 + cb)
    xa = lambda t, ks, tb: ar(16 * t + 8 * ks + 4 * tb, 4)
    a('v_mov_b32 v%d, v0' % vTID)
    wave_id(a, 1)
    a('v_and_b32 v%d, 63, v0' % vL)
    a('v_lshlrev_b32 v%d, 7, v%d' % (vT, vL))
    if opt.get('code', 1):
        l = a.newlabel('Lhere')
        e(code_touch(a, l, opt.get('code_end', 'Lcode_end'), vT, vJ, 96, 100))
        a.label(l)
    a('v_lshlrev_b32 v%d, 4, v%d' % (vX16, vL))
    a('''s_and_b32 s%d, s2, 1
    s_bfe_u32 s%d, s2, 0x30003
    s_lshl_b32 s%d, s%d, 1
    s_add_u32 s%d, s%d, s%d
    s_lshl_b32 s%d, s%d, 3
    s_add_u32 s%d, s%d, s%d''' % (S_RB, S_T0, S_SL, S_T0, S_SL, S_SL, S_RB, S_RB, S_RB, S_RB, S_RB, S_T0))
    a('''s_bfe_u32 s%d, s2, 0x20001
    s_lshr_b32 s%d, s2, 6
    s_add_u32 s%d, s%d, s%d
    s_lshl_b32 s%d, s%d, 2
    s_add_u32 s%d, s%d, s%d
    s_and_b32 s%d, s%d, 15
    s_lshl_b32 s%d, s%d, 2
    s_add_u32 s%d, s%d, s%d''' % (S_HP, S_T0, S_SL, S_SL, S_HP, S_T1, S_T0, S_SL, S_SL, S_T1, S_SL, S_SL, S_HP, S_HP, S_HP, S_HP, S_T0))
    a('s_lshl_b32 s%d, s%d, 2' % (S_PN, S_RB))
    a('s_add_u32 s%d, s%d, s%d' % (S_PN, S_PN, S_WAVE))
    a('s_lshl_b32 s%d, s%d, 12' % (S_WV, S_WAVE))
    a('s_mov_b32 s%d, s%d' % (S_QSL, S_SL))
    a('s_mul_i32 s%d, s%d, %d' % (S_WOFF, S_SL, 64 * 6144))
    a('s_lshl_b32 s%d, s%d, 7' % (S_XOFF, S_SL))
    a('''v_lshrrev_b32 v2, 3, v%d
    v_mul_u32_u24 v3, 6144, v2
    v_and_b32 v4, 2, v2
    v_and_b32 v5, 7, v%d
    v_xor_b32 v4, v4, v5
    v_lshl_add_u32 v3, v4, 4, v3''' % (vL, vL))
    a('s_mul_i32 s%d, s%d, %d' % (S_T0, S_WAVE, 16 * 6144))
    a('v_add_u32 v%d, s%d, v3' % (vW, S_T0))
    a('v_xor_b32 v3, 64, v%d' % vW)
    a('v_add_u32 v%d, %d, v3' % (vW + 1, 8 * 6144 - 1024))
    a('''v_lshlrev_b32 v3, 11, v2
    v_lshrrev_b32 v4, 4, v%d
    v_xor_b32 v4, v4, v5
    v_lshl_add_u32 v%d, v4, 4, v3''' % (vL, vXs))
    a('v_xor_b32 v3, 64, v%d' % vXs)
    a('v_add_u32 v%d, %d, v3' % (vXs + 1, 8 * 2048 - 1024))
    a('v_add_u32 v%d, %d, v%d' % (vXs + 2, 2 * (8 * 2048 - 1024), vXs))
    a('v_add_u32 v%d, %d, v3' % (vXs + 3, 3 * (8 * 2048 - 1024)))
    a('s_lshl_b32 s%d, s%d, 7' % (S_T1, S_HP))
    a('s_lshl_b32 s%d, s%d, 16' % (S_T0, S_PN))
    a('s_waitcnt lgkmcnt(0)')
    a('s_add_u32 s%d, s%d, s%d' % (SRD_Q, P_WQKV, S_T1))
    a('s_addc_u32 s%d, s%d, 0' % (SRD_Q + 1, P_WQKV + 1))
    a('s_sub_u32 s%d, %d, s%d' % (SRD_Q + 2, 1024 * 6144, S_T1))
    a('s_mov_b32 s%d, 0x20000' % (SRD_Q + 3))
    a('s_add_u32 s%d, s%d, 2048' % (SRD_KV, SRD_Q))
    a('s_addc_u32 s%d, s%d, 0' % (SRD_KV + 1, SRD_Q + 1))
    a('s_sub_u32 s%d, s%d, 2048' % (SRD_KV + 2, SRD_Q + 2))
    a('s_mov_b32 s%d, 0x20000' % (SRD_KV + 3))
    srd_off(a, SRD_X, P_X, 's%d' % S_T0, 65536)

    wslot = lambda s: (s % 5) * R
    xslot = lambda s: (5 + s % 3) * R
    def w_ops(s):
        return [([('s_add_u32 m0, s%d, %d' % (S_WV, wslot(s)), None)] if i == 0 else [],
                 ('buffer_load_dwordx4 v%d, s[%d:%d], s%d offen offset:%d lds' % (vW + (i & 1), SRD_KV, SRD_KV + 3, S_WOFF, 1024 * i), ('s', s))) for i in range(4)]
    def x_ops(s):
        return [([('s_add_u32 m0, s%d, %d' % (S_WV, xslot(s)), None)] if i == 0 else [],
                 ('buffer_load_dwordx4 v%d, s[%d:%d], s%d offen offset:%d lds' % (vXs + i, SRD_X, SRD_X + 3, S_XOFF, 1024 * i), ('s', s))) for i in range(4)]
    adv = ['s_add_u32 s%d, s%d, 1' % (S_SL, S_SL), 's_and_b32 s%d, s%d, 15' % (S_SL, S_SL),
           's_mul_i32 s%d, s%d, %d' % (S_WOFF, S_SL, 64 * 6144), 's_lshl_b32 s%d, s%d, 7' % (S_XOFF, S_SL)]
    qreg = [wslot(11), wslot(12), xslot(13), xslot(14), xslot(15), wslot(13), wslot(14), wslot(15)]
    def q_ops(t, base=None):
        b = qreg[t >> 1] + (t & 1) * 2048 if base is None else base
        pre = [('s_mul_i32 s%d, s%d, %d' % (S_QOFF, S_QSL, 64 * 6144), None), ('s_add_u32 m0, s%d, %d' % (S_WV, b), None)]
        mid = [] if base is not None else [('s_add_u32 s%d, s%d, 1' % (S_QSL, S_QSL), None), ('s_and_b32 s%d, s%d, 15' % (S_QSL, S_QSL), None)]
        return [(pre if j == 0 else mid, ('buffer_load_dwordx4 v%d, s[%d:%d], s%d offen offset:%d lds' % (vW + j, SRD_Q, SRD_Q + 3, S_QOFF, 1024 * j), ('q', t))) for j in range(2)]
    def flat(ops):
        return [p + ([('s_nop 0', None)] if p and 'm0' in p[-1][0] else []) + [o] for p, o in ops]
    def burst(ops, tag=None):
        for it in flat(ops):
            for y, t in it: e(y, tag if tag and t else t)
    advi = [[(x, None) for x in adv]]
    burst(x_ops(0), 'x0'); burst(w_ops(0)); burst(q_ops(0, EXCH))
    for x in adv: a(x)
    srd_off(a, SRD_S, P_WS, WS_ST1, A2_BYTES)
    srd(a, SRD_D, 's%d' % P_DBG, 's%d' % (P_DBG + 1), 256)
    srd_off(a, SRD_O, P_WS, WS_SMALL, SM_BYTES)
    a('s_mul_i32 s%d, s%d, %d' % (S_KVA, S_HP, KVA_REC))
    a('s_add_u32 s%d, s%d, %d' % (S_KVA, S_KVA, WS_KVA - WS_ST1))
    a('s_mov_b32 s%d, 0x%x' % (S_E, f2u(1e-6))); a('s_mov_b32 s%d, s%d' % (S_E + 1, S_E))
    a('s_mov_b32 s%d, 0xffff0000' % S_M)
    S_1 = 0
    a('s_mov_b32 s0, 1.0'); a('s_mov_b32 s1, 1.0')
    a('''v_lshrrev_b32 v2, 5, v%d
    v_lshlrev_b32 v2, 12, v2
    v_bfe_u32 v3, v%d, 4, 1
    v_lshl_add_u32 v2, v3, 10, v2
    v_bfe_u32 v4, v%d, 2, 2
    v_lshl_add_u32 v2, v4, 7, v2
    v_bfe_u32 v4, v%d, 3, 2
    v_lshl_add_u32 v2, v4, 5, v2
    v_and_b32 v4, 3, v%d
    v_lshl_add_u32 v%d, v4, 3, v2''' % (vL, vL, vL, vL, vL, vRd))
    for u in range(1, 4): a('v_xor_b32 v%d, %d, v%d' % (vRd + u, 32 * u, vRd))
    for u in range(4): a('v_add_u32 v%d, 0x10000, v%d' % (vRd + 4 + u, vRd + u))
    a('''v_and_b32 v2, 15, v%d
    v_lshrrev_b32 v3, 1, v2
    v_lshrrev_b32 v4, 4, v%d
    v_xor_b32 v3, v3, v4
    v_lshlrev_b32 v3, 4, v3
    v_lshl_add_u32 v2, v2, 7, v3''' % (vL, vL))
    a('s_add_u32 s%d, s%d, %d' % (S_T0, S_WV, 5 * R))
    a('v_add_u32 v%d, s%d, v2' % (vXR, S_T0))
    a('v_xor_b32 v%d, 64, v%d' % (vXR + 1, vXR))
    def wread(reg_base, ks, seg, u, dst):
        o = reg_base + ks * 8192 + seg * 2048
        return ['ds_read_b64_tr_b16 v[%d:%d], v%d offset:%d' % (dst + 2 * h, dst + 2 * h + 1, vRd + u + 4 * (o >> 16), (o & 0xffff) + 512 * h) for h in range(2)]
    def xread(s, ks, tb, dst=None):
        return 'ds_read_b128 %s, v%d offset:%d' % (dst or xa(s, ks, tb), vXR + ks, (s % 3) * R + tb * 2048)
    ONE = T + 44
    vG1, vG2, vONE, vPV = T + 40, T + 41, T + 42, T + 43
    vCW, vSW, vSA, vSB, vCA, vCB, vEW, vEK, vEV, vL4, vZA, vG16 = range(T + 24, T + 36)
    vCSA, vCS0, vCS1, vST = T + 36, T + 37, T + 38, T + 39
    vMX = 99
    CST = EXCH + 4096
    for r in range(4): a('v_mov_b32 v%d, 0x3f803f80' % (ONE + r))
    a('v_mov_b32 v%d, 1' % vONE)
    a('s_lshl_b32 s%d, s%d, 5' % (S_T0, S_WAVE))
    a('v_xor_b32 v%d, s%d, v%d' % (vCS0, S_T0, vRd))
    a('v_add_u32 v%d, %d, v%d' % (vCS1, EXCH, vCS0))
    a('v_lshlrev_b32 v%d, 2, v%d' % (vL4, vL))
    a('v_and_b32 v%d, 0x30, v%d' % (vG16, vL))
    a('v_lshrrev_b32 v2, 4, v%d' % vL)
    a('v_and_b32 v3, 15, v%d' % vL)
    a('v_lshlrev_b32 v3, 2, v3')
    a('v_cmp_eq_u32 s[68:69], 1, v2')
    a('v_cmp_eq_u32 s[100:101], 2, v2')
    a('v_lshl_add_u32 v4, v2, 8, v3')
    a('v_add_u32 v5, 1, v2')
    a('v_lshrrev_b32 v5, 2, v5')
    a('v_lshl_add_u32 v%d, v5, 22, v4' % vCSA)
    a('v_add_u32 v%d, %d, v3' % (vCB, CST))
    a('v_add_u32 v%d, %d, v%d' % (vCA, CST, vG16))
    a('s_lshl_b32 s%d, s%d, 13' % (S_T0, S_WAVE))
    a('s_add_u32 s%d, s%d, %d' % (S_T0, S_T0, EXCH))
    a('v_lshl_add_u32 v%d, v3, 1, s%d' % (vSW, S_T0))
    a('v_add_u32 v%d, s%d, v%d' % (vSA, S_T0, vG16))
    a('v_add_u32 v%d, s%d, v3' % (vSB, S_T0))
    a('v_add_u32 v%d, s%d, v%d' % (vEW, S_T0, vX16))
    a('v_bfe_u32 v4, v%d, 2, 2' % vL)
    a('v_and_b32 v5, 3, v%d' % vL)
    a('v_lshlrev_b32 v6, 8, v4')
    a('v_lshl_add_u32 v6, v5, 4, v6')
    a('v_mul_u32_u24 v7, %d, v2' % (4 * 768))
    a('v_add_u32 v%d, v6, v7' % vG2)
    a('s_lshl_b32 s%d, s%d, 6' % (S_T0, S_WAVE))
    a('s_add_u32 s%d, s%d, %d' % (S_T0, S_T0, CST))
    a('v_add_u32 v%d, s%d, v6' % (vCW, S_T0))
    a('v_lshl_add_u32 v6, v5, 2, v%d' % vG16)
    a('v_lshl_add_u32 v%d, v4, 22, v6' % vZA)
    a('s_lshl_b32 s%d, s%d, 10' % (S_T0, S_WAVE))
    a('s_add_u32 s%d, s%d, %d' % (S_T0, S_T0, EXCH))
    a('v_add_u32 v%d, s%d, v%d' % (vEK, S_T0, vX16))
    a('s_lshr_b32 s%d, s%d, 1' % (S_T0, S_WAVE))
    a('s_lshl_b32 s%d, s%d, 11' % (S_T0, S_T0))
    a('s_add_u32 s%d, s%d, %d' % (S_T0, S_T0, EXCH + 4096))
    a('v_add_u32 v%d, s%d, v%d' % (vEV, S_T0, vX16))
    a('v_lshrrev_b32 v3, 5, v%d' % vL)
    a('v_lshlrev_b32 v4, 22, v3')
    a('v_lshl_add_u32 v%d, v%d, 3, v4' % (vST, vL))
    a('v_and_b32 v2, 15, v%d' % vL)
    a('v_lshlrev_b32 v3, 8, v%d' % vG16)
    a('v_lshl_add_u32 v%d, v2, 4, v3' % vG1)
    a('v_lshlrev_b32 v4, 18, v%d' % vG16)
    a('v_lshl_add_u32 v%d, v2, 3, v4' % vMX)
    a('v_lshlrev_b32 v%d, 22, v%d' % (vPA, vTID))
    a('v_and_b32 v2, 1, v%d' % vL)
    a('v_lshlrev_b32 v%d, 7, v2' % vP)
    S_G1, S_G2, S_AR, S_ST, S_CS = 94, 95, 63, 96, 97
    a('s_lshl_b32 s%d, s%d, 14' % (S_G1, S_RB))
    a('s_lshl_b32 s%d, s%d, 8' % (S_T1, S_WAVE))
    a('s_add_u32 s%d, s%d, s%d' % (S_G1, S_G1, S_T1))
    a('s_lshl_b32 s%d, s%d, 10' % (S_T0, S_HP))
    a('s_add_u32 s%d, s%d, s%d' % (S_ST, S_G1, S_T0))
    a('s_mul_i32 s%d, s%d, %d' % (S_G2, S_HP, 16 * 768))
    a('s_lshl_b32 s%d, s%d, 6' % (S_T1, S_WAVE))
    a('s_add_u32 s%d, s%d, s%d' % (S_G2, S_G2, S_T1))
    a('s_add_u32 s%d, s%d, %d' % (S_G2, S_G2, WS_CS1 - WS_ST1))
    a('s_mul_i32 s%d, s%d, 768' % (S_T0, S_RB))
    a('s_add_u32 s%d, s%d, s%d' % (S_CS, S_G2, S_T0))
    a('s_and_b32 s%d, s2, 1' % S_AR)
    a('s_lshl_b32 s%d, s%d, 7' % (S_AR, S_AR))
    NARR = opt.get('narr', 4)
    if NARR > 1:
        a('s_bfe_u32 s%d, s2, 0x%x' % (S_T0, (NARR.bit_length() - 1) << 16 | 3))
        a('s_lshl_b32 s%d, s%d, 8' % (S_T0, S_T0))
        a('s_add_u32 s%d, s%d, s%d' % (S_AR, S_AR, S_T0))
    for r in range(4): a('v_mov_b32 v%d, 0' % (T + r))
    a('v_cmp_gt_u32 vcc, 34, v%d' % vTID)
    a('s_mul_i32 s%d, s%d, 544' % (S_T0, S_RB))
    a('s_add_u32 s%d, s%d, s%d' % (S_T0, S_T0, S_KVA))
    a('v_mov_b32 v2, 0x400000')
    a('v_cndmask_b32 v2, v2, v%d, vcc' % vX16)
    e('buffer_store_dwordx4 v[%d:%d], v2, s[%d:%d], s%d offen sc1' % (T, T + 3, SRD_S, SRD_S + 3, S_T0), 'pub')
    e.wait(vm=['x0'])
    mark('landx')
    for tb in range(2):
        for ks in range(2): e(xread(0, ks, tb, vr(T + 4 + 8 * tb + 4 * ks, 4)), 'x0')
    for ks in range(2):
        for tb in range(2): e(xread(0, ks, tb), ('x', 0, ks))
    e.wait(lds=['x0'])
    m = []
    for i in range(16):
        m += ['v_lshlrev_b32 v%d, 16, v%d' % (2 * i, T + 4 + i), 'v_and_b32 v%d, s%d, v%d' % (2 * i + 1, S_M, T + 4 + i)]
    S0, S1 = 32, 36
    for tb in range(2):
        s = S0 + 2 * tb
        m.append(pk('add', s, 16 * tb, 16 * tb + 2))
        m += [pk('add', s, s, 16 * tb + 2 * i) for i in range(2, 8)]
        m.append('v_add_f32 v%d, v%d, v%d' % (s, s, s + 1))
    m += allsum4([S0, S0 + 2], 40)
    for tb in range(2):
        m.append('v_mul_f32 v%d, 0x%x, v%d' % (S0 + 2 * tb + 1, f2u(-1.0 / 64), S0 + 2 * tb))
        r, md = bc(S0 + 2 * tb + 1, 1, 2)
        m += [pk('add', 16 * tb + 2 * i, 16 * tb + 2 * i, r, None, md) for i in range(8)]
        s = S1 + 2 * tb
        m.append(pk('mul', s, 16 * tb, 16 * tb))
        m += [pk('fma', s, 16 * tb + 2 * i, 16 * tb + 2 * i, s) for i in range(1, 8)]
        m.append('v_add_f32 v%d, v%d, v%d' % (s, s, s + 1))
    m += ['s_nop 1', 'v_permlane16_swap_b32 v%d, v%d' % (S1, S1 + 2), 'v_permlane16_swap_b32 v%d, v%d' % (S0, S0 + 2),
          'v_add_f32 v%d, v%d, v%d' % (S1, S1, S1 + 2), 'v_mov_b32 v%d, v%d' % (S1 + 1, S1), 's_nop 1',
          'v_permlane32_swap_b32 v%d, v%d' % (S1, S1 + 1), 'v_mov_b32 v%d, v%d' % (T + 20, S0),
          'v_add_f32 v%d, v%d, v%d' % (T + 21, S1, S1 + 1)]
    weave(e, m, flat(x_ops(1) + w_ops(1)) + advi, opt.get('wv0', 12))
    e('buffer_store_dwordx2 v[%d:%d], v%d, s[%d:%d], s%d offen sc1' % (T + 20, T + 21, vST, SRD_S, SRD_S + 3, S_ST), 'pub')
    burst(w_ops(2) + x_ops(2))
    for x in adv: a(x)
    e.wait(vm=[('q', 0)])
    a('s_barrier')
    mark('land0')
    CW, CSD = G1, T + 4
    for ks in range(2):
        for seg in range(3):
            d = CW + 4 * (ks * 3 + seg)
            for h in range(2):
                e('ds_read_b64_tr_b16 v[%d:%d], v%d offset:%d' % (d + 2 * h, d + 2 * h + 1, vCS0 if seg else vCS1,
                                                                ks * 8192 + (seg - 1 if seg else 0) * 2048 + 512 * h), ('c', ks))
    D = 6
    def p1_reads(gf):
        s, f = divmod(gf, 16); ks, cb = divmod(f, 8)
        return wread(wslot(s), ks, cb >> 2, cb & 3, WR + 4 * (gf % 8))
    for ks in range(2):
        e.wait(lds=[('c', ks)])
        for seg in range(3):
            d = CSD + 4 * seg
            a('v_mfma_f32_16x16x32_bf16 v[%d:%d], %s, %s, %s' % (d, d + 3, vr(ONE, 4), vr(CW + 4 * (ks * 3 + seg), 4), vr(d, 4) if ks else '0'))
            for r in p1_reads(3 * ks + seg): e(r, ('w', 3 * ks + seg))
    fl = Fill(e)
    fl.add(['v_cndmask_b32 v%d, v%d, v%d, s[68:69]' % (CSD, CSD, CSD + 4),
            'v_cndmask_b32 v%d, v%d, v%d, s[100:101]' % (CSD, CSD, CSD + 8),
            ('buffer_store_dword v%d, v%d, s[%d:%d], s%d offen sc1' % (CSD, vCSA, SRD_S, SRD_S + 3, S_CS), 'pub')], 6)
    poll1 = 'buffer_load_dword v%d, v%d, s[%d:%d], 0 offen sc1' % (vPV, vP, SRD_D, SRD_D + 3)
    ARR, POLL, CHK = opt.get('arr', 1), opt.get('poll', 10), opt.get('chk', 12)
    fl.add([(poll1, 'poll')], 32 * POLL)
    fv = Fill(e)
    g0 = 32 * 13
    for i in range(4):
        fv.add([('buffer_load_dwordx4 v[%d:%d], v%d, s[%d:%d], s%d offen offset:%d sc1' % (G2 + 4 * i, G2 + 4 * i + 3, vG2, SRD_S, SRD_S + 3, S_G2, i * 768), 'g2')], g0)
    for i in range(4):
        fv.add([('buffer_load_dwordx4 v[%d:%d], v%d, s[%d:%d], s%d offen offset:%d sc1' % (G1 + 4 * i, G1 + 4 * i + 3, vG1, SRD_S, SRD_S + 3, S_G1, i * 1024), 'g1')])
    NQ1 = opt.get('nq1', 8)
    m = [lambda: e.wait(vm=['g2'])]
    m += [pk('add', G2 + 2 * h, G2 + 2 * h, G2 + 4 + 2 * h) for h in range(2)]
    m += [pk('add', G2 + 8 + 2 * h, G2 + 8 + 2 * h, G2 + 12 + 2 * h) for h in range(2)]
    m += [pk('add', G2 + 2 * h, G2 + 2 * h, G2 + 8 + 2 * h) for h in range(2)]
    m += allsum4([G2, G2 + 1, G2 + 2, G2 + 3], G2 + 4)
    m += [('ds_write_b128 v%d, v[%d:%d]' % (vCW, G2, G2 + 3), 'tw'), lambda: e.wait(vm=['g1'])]
    NM, RS, M2, DV = T, T + 2, T + 4, T + 6
    for h in range(2):
        m += ['v_add_f32 v%d, v%d, v%d' % (NM + h, G1 + 2 * h, G1 + 4 + 2 * h), 'v_add_f32 v%d, v%d, v%d' % (DV + h, G1 + 8 + 2 * h, G1 + 12 + 2 * h),
              'v_add_f32 v%d, v%d, v%d' % (NM + h, NM + h, DV + h)]
    m += allsum4([NM, NM + 1], DV)
    m += ['s_mov_b32 s%d, 0x%x' % (S_T0, f2u(1.0 / 64))]
    for h in range(2):
        m += ['v_mul_f32 v%d, 0x%x, v%d' % (NM + h, f2u(-1.0 / 1024), NM + h),
              'v_add_f32 v%d, v%d, v%d' % (M2 + h, G1 + 2 * h + 1, G1 + 4 + 2 * h + 1), 'v_add_f32 v%d, v%d, v%d' % (DV + h, G1 + 8 + 2 * h + 1, G1 + 12 + 2 * h + 1),
              'v_add_f32 v%d, v%d, v%d' % (M2 + h, M2 + h, DV + h), 'v_mul_f32 v%d, s%d, v%d' % (M2 + h, S_T0, M2 + h)]
        for i in range(4):
            m += ['v_fma_f32 v%d, v%d, s%d, v%d' % (DV, G1 + 4 * i + 2 * h, S_T0, NM + h), 'v_fmac_f32 v%d, v%d, v%d' % (M2 + h, DV, DV)]
    m += allsum4([M2, M2 + 1], DV)
    for h in range(2):
        m += ['v_mov_b32 v%d, 0x%x' % (DV + h, f2u(1e-5)), 'v_fmac_f32 v%d, 0x%x, v%d' % (DV + h, f2u(1.0 / 16), M2 + h),
              'v_rsq_f32 v%d, v%d' % (RS + h, DV + h)]
    m += [('ds_write_b64 v%d, v[%d:%d]' % (vSW, NM, NM + 1), 'tw'), ('ds_write_b64 v%d, v[%d:%d] offset:128' % (vSW, RS, RS + 1), 'tw')]
    fl.add(unpk(m), opt.get('proc', 32 * 14 + 8))
    e.wait(lds=[('w', 1), ('x', 0, 0)])

    for s in range(16):
        last = s == 15
        mark('s%d' % s)
        ops = w_ops(s + 3) + x_ops(s + 3) if s + 3 < 16 else None
        qs = sum([q_ops(t) for t in range(4 * (s - 14), min(NQ1, 4 * (s - 13)))], []) if s >= 14 else []
        qn = q_ops(4 * (s - 13))[0][0][:1] if s >= 13 and 4 * (s - 13) < NQ1 else []
        for g in range(8):
            for j in range(4):
                f = 2 * g + (j >> 1); tb = j & 1
                ks, cb = divmod(f, 8)
                c = vr(acc(tb, cb), 4)
                idx = 32 * s + 4 * g + j
                a('v_mfma_f32_16x16x32_bf16 %s, %s, %s, %s' % (c, xa(s, ks, tb), vr(WR + 4 * ((16 * s + f) % 8), 4), '0' if s == 0 and ks == 0 else c))
                used = 0
                if tb == 0:
                    if j == 0 and ops and ops[g][0]: e(*ops[g][0][0])
                    elif ops and s + 3 < 15 and (g, j) in ((5, 0), (5, 2), (6, 0), (7, 2)):
                        a(adv[[(5, 0), (5, 2), (6, 0), (7, 2)].index((g, j))])
                    elif j == 0 and g < len(qs): e(*qs[g][0][1])
                    elif j == 2 and g + 1 < len(qs): e(*qs[g + 1][0][0])
                    elif j == 2 and g == 7 and qn: e(*qn[0])
                    else: fl.pre(idx)
                    if f + D < 16 or not last:
                        for r in p1_reads(16 * s + f + D): e(r, ('w', 16 * s + f + D))
                        used = 2
                elif j == 1:
                    if ops: e(*ops[g][1]); used = 2
                    elif g < len(qs): e(*qs[g][1]); used = 2
                    elif fv.q: fv.post(idx, 0); used = 2
                    else: fl.pre(idx)
                else:
                    nf = 16 * s + 2 * g + 2
                    need = [('w', nf + 1)]
                    if g == 3: need.append(('x', s, 1))
                    if g == 7: need.append(('x', s + 1, 0))
                    if g == 4 and not last:
                        arr = ARR <= s < ARR + NARR
                        e.wait(lds=need, vm=[('s', s + 1)] + (['pub'] if arr else []) + (['poll'] if s == CHK else []))
                        a('s_barrier')
                        if arr:
                            e('buffer_atomic_add v%d, v%d, s[%d:%d], s%d offen sc1' % (vONE, vPA, SRD_D, SRD_D + 3, S_AR))
                            a('s_sub_u32 s%d, s%d, 256' % (S_AR, S_AR))
                            a('s_and_b32 s%d, s%d, 0xfff' % (S_AR, S_AR))
                        if s == CHK:
                            spin(a, e, poll1, vPV, '0x80', S_T0)
                    elif not (last and g == 7):
                        e.wait(lds=need)
                    if not last and g >= 4:
                        e(xread(s + 1, (g - 4) >> 1, g & 1), ('x', s + 1, (g - 4) >> 1)); used = 2
                fl.post(idx, used)
    mark('p1end')
    fl.flush()
    e.wait(lds=['tw'])
    a('s_barrier')
    mark('bar1')
    for tb in range(2):
        e('ds_read_b128 %s, v%d offset:%d' % (vr(MEA + 4 * tb, 4), vSA, 64 * tb), 't1')
    for cb in range(8): e('ds_read_b32 v%d, v%d offset:%d' % (CSK + cb, vCB, 256 + 64 * cb), 't1')
    for tb in range(2):
        e('ds_read_b128 %s, v%d offset:%d' % (vr(RSA + 4 * tb, 4), vSA, 128 + 64 * tb), 't2')
    for tb in range(2):
        e('ds_read_b32 v%d, v%d offset:%d' % (MEB + tb, vSB, 64 * tb), 't2')
        e('ds_read_b32 v%d, v%d offset:%d' % (RSB + tb, vSB, 128 + 64 * tb), 't2')
    for cb in range(4): e('ds_read_b128 %s, v%d offset:%d' % (vr(CSQ + 4 * cb, 4), vCA, 64 * cb), 't2')
    qrest = list(range(NQ1, 16))
    burst(q_ops(qrest.pop(0)))
    a('v_sub_f32 v%d, 0, v%d' % (T + 22, NM))
    a('v_sub_f32 v%d, 0, v%d' % (T + 23, NM + 1))
    a('s_lshl_b32 s%d, s%d, 7' % (S_T1, S_PN))
    a('s_lshl_b32 s%d, s%d, 20' % (S_T0, S_HP))
    a('s_add_u32 s%d, s%d, s%d' % (S_T1, S_T1, S_T0))
    a('s_add_u32 s%d, s%d, %d' % (S_T1, S_T1, SM_MX))
    e('buffer_store_dwordx2 v[%d:%d], v%d, s[%d:%d], s%d offen' % (T + 22, T + 23, vMX, SRD_O, SRD_O + 3, S_T1))
    a('s_lshl_b32 s%d, s2, 2' % S_T0)
    a('s_add_u32 s%d, s%d, s%d' % (S_T0, S_T0, S_WAVE))
    a('s_lshl_b32 s%d, s%d, 11' % (S_T0, S_T0))
    srd_off(a, SRD_X, P_WO, 's%d' % S_T0, 2048)
    a('s_mov_b32 s%d, 0x%x' % (S_T0, f2u(LOG2E)))
    KF, VF = G1, G2
    e.wait(lds=['t1'])
    for cb in range(8):
        r, md = bc(CSK + cb, 1, 3)
        for i in range(4): a(pk('fma', 8 * cb + 2 * i, MEA + 2 * i, r, 8 * cb + 2 * i, md))
        if cb == 4: burst(q_ops(qrest.pop(0)))
    e.wait(lds=['t2'])
    a('s_barrier')
    mark('bar2')
    m = ['v_mul_f32 v%d, s%d, v%d' % (RLA + i, S_T0, RSA + i) for i in range(8)]
    m += ['v_mul_f32 v%d, s%d, v%d' % (RLB + i, S_T0, RSB + i) for i in range(2)]
    m += [pk('mul', 32 + 2 * i, 32 + 2 * i, RSA + 2 * (i & 3)) for i in range(16)]
    m += ['v_cvt_pk_bf16_f32 v%d, v%d, v%d' % (VF + i, 32 + 2 * i, 33 + 2 * i) for i in range(16)]
    wr_v = ['ds_write_b128 v%d, %s offset:%d' % (vEW, vr(VF + 4 * i, 4), 4096 + 1024 * i) for i in range(4)]
    wr_k = ['ds_write_b128 v%d, %s offset:%d' % (vEW, vr(KF + 4 * i, 4), 1024 * i) for i in range(4)]
    for half in range(2):
        b = 16 * half
        p = phi8([b + 2 * i for i in range(8)], T, lambda i, n: (RLA + 2 * (i & 3), ''), lambda i, n: (RSA + 2 * (i & 3), ''), S_1, S_E)
        p += ['v_cvt_pk_bf16_f32 v%d, v%d, v%d' % (KF + 8 * half + i, b + 2 * i, b + 2 * i + 1) for i in range(8)]
        w = wr_v if half == 0 else wr_k[:2]
        step = len(p) // len(w)
        for i, x in enumerate(w): p.insert(i * (step + 1), x)
        m += p
    m += wr_k[2:]
    WO = MEA
    wols = [([], ('buffer_load_dwordx4 %s, v%d, s[%d:%d], 0 offen offset:%d' % (vr(WO + 4 * i, 4), vX16, SRD_X, SRD_X + 3, 1024 * i), 'wo')) for i in range(2)]
    side = flat(sum([q_ops(t) for t in qrest], []) + wols)
    weave(e, m, side, opt.get('wv1', len(m) // len(side)))
    mark('phik')
    S_KB, S_ZB = S_G1, S_G2
    a('s_lshl_b32 s%d, s%d, 11' % (S_KB, S_WAVE))
    a('s_add_u32 s%d, s%d, s%d' % (S_KB, S_KB, S_KVA))
    a('s_lshl_b32 s%d, s%d, 6' % (S_ZB, S_WAVE))
    a('s_add_u32 s%d, s%d, s%d' % (S_ZB, S_ZB, S_KVA))
    a('s_add_u32 s%d, s%d, 8192' % (S_ZB, S_ZB))
    a('s_add_u32 s%d, s%d, 8448' % (S_AR, S_KVA))
    e.wait(vm=[('q', 3)]); e.wait_all(lds=True)
    a('s_barrier')
    mark('bar3')
    EX = lambda w, j: vr((G1 + 12 * w + 4 * j) if w < 2 else (T + 12 * (w - 2) + 4 * j), 4)
    for w in range(4):
        e('ds_read_b128 %s, v%d offset:%d' % (EX(w, 0), vEK, 8192 * w), ('e', w))
        e('ds_read_b128 %s, v%d offset:%d' % (EX(w, 1), vEV, 8192 * w), ('e', w))
        e('ds_read_b128 %s, v%d offset:%d' % (EX(w, 2), vEV, 8192 * w + 1024), ('e', w))
    KV, PQ = 48, 32
    a('v_and_b32 v60, 3, v%d' % vL)
    a('v_cmp_eq_u32 vcc, 1, v60')
    a('v_cmp_eq_u32 s[68:69], 2, v60')
    a('v_cmp_eq_u32 s[100:101], 3, v60')
    a('v_mov_b32 v%d, 0' % vP)
    order = [(t, ks, cb) for t in range(4) for ks in range(2) for cb in range(4)]
    order += [(t, ks, cb) for cb in range(4) for t in range(4, 16) for ks in range(2)]
    def p2_reads(gf):
        t, ks, cb = order[gf]
        return wread(qreg[t >> 1], ks, t & 1, cb, WR + 4 * (gf % 8))
    for w in range(4):
        e.wait(lds=[('e', w)])
        for j in range(3):
            d = vr(KV + 4 * j, 4)
            a('v_mfma_f32_16x16x32_bf16 %s, %s, %s, %s' % (d, EX(w, 0), EX(w, 1 + j) if j < 2 else vr(ONE, 4), d if w else '0'))
            if w >= 2:
                for r in p2_reads(3 * (w - 2) + j): e(r, ('v', 3 * (w - 2) + j))
    fl = Fill(e)
    fl.add([('buffer_atomic_add_f32 v%d, v%d, s[%d:%d], s%d offen offset:%d' % (KV + i, vL4, SRD_S, SRD_S + 3, S_KB, 256 * i), 'at') for i in range(8)], 5)
    fl.add(['v_cndmask_b32 v%d, v%d, v%d, vcc' % (KV + 8, KV + 8, KV + 9),
            'v_cndmask_b32 v%d, v%d, v%d, s[68:69]' % (KV + 8, KV + 8, KV + 10),
            'v_cndmask_b32 v%d, v%d, v%d, s[100:101]' % (KV + 8, KV + 8, KV + 11),
            ('buffer_atomic_add_f32 v%d, v%d, s[%d:%d], s%d offen' % (KV + 8, vZA, SRD_S, SRD_S + 3, S_ZB), 'at')])
    def touch(rounds):
        d = Asm(); ld = gu_touch(d, rounds, vT, vJ, S_WOFF, S_XOFF)
        return [x.strip() for x in d.lines] + [ld]
    if opt.get('gu'): fl.add(touch(opt['gu']), opt.get('gu_at', 0))
    fl.add('''s_lshr_b32 s%d, s2, 3
    s_lshl_b32 s%d, s%d, 6
    s_and_b32 s%d, s2, 3
    s_lshl_b32 s%d, s%d, 4
    s_add_u32 s%d, s%d, s%d
    s_bfe_u32 s%d, s2, 0x10002
    s_lshl_b32 s%d, s%d, 3
    s_add_u32 s%d, s%d, s%d
    s_lshl_b32 s%d, s%d, 1
    s_add_u32 s%d, s%d, s%d
    s_add_u32 s%d, s%d, %d'''.replace('    ', '').__mod__((S_T0, S_T0, S_T0, S_T1, S_T1, S_T1, S_T0, S_T0, S_T1, S_T1, S_T1, S_T1, S_T0, S_T0, S_T1,
                                 S_T1, S_WAVE, S_T0, S_T0, S_T1, S_QOFF, S_T0, SM_WBAR)).split('\n'))
    vKW, vZW, vKR, vZR, vWB = vCW, vSW, vSA, vSB, vCA
    fl.add(['s_lshr_b32 s%d, s%d, 1' % (S_T0, S_WAVE), 's_and_b32 s%d, s%d, 1' % (S_T1, S_WAVE), 's_lshl_b32 s%d, s%d, 3' % (S_T1, S_T1),
            's_add_u32 s%d, s%d, %d' % (S_T1, S_T1, EXCH), 's_lshl_b32 s%d, s%d, 11' % (S_QSL, S_T0), 's_add_u32 s%d, s%d, s%d' % (S_QSL, S_QSL, S_T1),
            's_lshl_b32 s%d, s%d, 6' % (S_T0, S_T0), 's_add_u32 s%d, s%d, s%d' % (S_T0, S_T0, S_T1),
            'v_add_u32 v%d, s%d, v%d' % (vKW, S_QSL, vX16), 'v_add_u32 v%d, s%d, v%d' % (vZW, S_T0, vG16),
            'v_add_u32 v%d, %d, v%d' % (vKR, EXCH, vX16), 'v_add_u32 v%d, %d, v%d' % (vZR, EXCH, vG16),
            'v_lshlrev_b32 v%d, 20, v%d' % (vWB, vL),
            's_lshl_b32 s%d, s%d, 16' % (S_T0, S_PN), 's_lshl_b32 s%d, s%d, 12' % (S_T1, S_HP), 's_add_u32 s%d, s%d, s%d' % (S_T0, S_T0, S_T1),
            's_add_u32 s%d, s%d, %d' % (S_T0, S_T0, WS_O),
            's_add_u32 s%d, s%d, s%d' % (SRD_KV, P_WS, S_T0), 's_addc_u32 s%d, s%d, 0' % (SRD_KV + 1, P_WS + 1), 's_mov_b32 s%d, 4096' % (SRD_KV + 2)])
    d = Asm(); wave_allsum(d, [60], 61)
    m = [lambda: e.wait(vm=['wo']), 'v_lshlrev_b32 v60, 16, v%d' % WO, 'v_and_b32 v61, s%d, v%d' % (S_M, WO)]
    for i in range(1, 8):
        m += ['v_lshlrev_b32 v62, 16, v%d' % (WO + i), 'v_and_b32 v63, s%d, v%d' % (S_M, WO + i), pk('add', 60, 60, 62)]
    m += ['v_add_f32 v60, v60, v61'] + [x.strip() for x in d.lines]
    m += ['v_mul_f32 v60, 0x%x, v60' % f2u(1.0 / 1024), 'v_cvt_pk_bf16_f32 v60, v60, v60',
          'buffer_store_short v60, v%d, s[%d:%d], s%d offen' % (vWB, SRD_O, SRD_O + 3, S_QOFF)]
    fl.add(unpk(m), opt.get('wo_at', 76))
    def qphi(cb):
        regs = [accq(tb, cb) + 2 * h for tb in range(2) for h in range(2)]
        o = []
        for i, r in enumerate(regs):
            x, md = bc(MEB + (i >> 1), 1, 3); o.append(pk('fma', r, CSQ + 4 * cb + 2 * (i & 1), x, r, md))
        o += phi8(regs, T, lambda i, n: bc(RLB + (i >> 1), 1, n), lambda i, n: bc(RSB + (i >> 1), 1, n), S_1, S_E)
        o += ['v_cvt_pk_bf16_f32 v%d, v%d, v%d' % (PQ + 8 * (i >> 1) + 2 * cb + (i & 1), r, r + 1) for i, r in enumerate(regs)]
        return o
    poll2 = 'buffer_load_dword v%d, v%d, s[%d:%d], s%d offen sc1' % (vPV, vP, SRD_S, SRD_S + 3, S_AR)
    def check2():
        mark('prepoll')
        e.wait(vm=['poll']); spin(a, e, poll2, vPV, '16', S_T0)
        mark('polled')
    rb = [('buffer_load_dword v%d, v%d, s[%d:%d], s%d offen offset:%d sc1' % (KV + i, vL4, SRD_S, SRD_S + 3, S_KB, 256 * i), 'rb') for i in range(8)]
    rb.append(('buffer_load_dwordx4 %s, v%d, s[%d:%d], s%d offen sc1' % (vr(KV + 8, 4), vG16, SRD_S, SRD_S + 3, S_ZB), 'rb'))
    if opt.get('gu2'): rb += touch(opt['gu2'])
    for cb in range(3): fl.add(unpk(qphi(cb)), 64 + 48 * (cb + 1) + 5)
    fv = Fill(e)
    fv.add([(poll2, 'poll')], opt.get('poll2', 160))
    fv.add([check2] + rb, opt.get('chk2', 200))
    SIG, PB = opt.get('sig', 24), 12
    e.wait(lds=[('v', 1)])
    mark('p2start')
    CAP = opt.get('cap', 3)
    for g in range(64):
        for j in range(4):
            gf = 2 * g + (j >> 1); tb = j & 1; idx = 4 * g + j
            t, ks, cb = order[gf]
            c = vr(accq(tb, cb), 4)
            a('v_mfma_f32_16x16x32_bf16 %s, %s, %s, %s' % (c, vr(WR + 4 * (gf % 8), 4), xa(t, ks, tb), '0' if gf < 4 else c))
            used = 0
            q = fv if fv.q and fv.q[0][2] <= idx else fl
            if j < 3 or g == 63: q.pre(idx)
            if tb == 0:
                if gf + D < 128:
                    for r in p2_reads(gf + D): e(r, ('v', gf + D))
                    used = 2
            elif j == 3 and g < 63:
                if g == PB and SIG > PB:
                    e.wait(lds=[('v', 2 * g + 3)], vm=[('q', 15)])
                    a('s_barrier')
                elif g == SIG:
                    mark('presig')
                    e.wait(lds=[('v', 2 * g + 3)], vm=['at'])
                    a('s_barrier')
                    mark('sig')
                    e('buffer_atomic_add v%d, v%d, s[%d:%d], s%d offen sc1' % (vONE, vPA, SRD_S, SRD_S + 3, S_AR)); used = 2
                else:
                    e.wait(lds=[('v', 2 * g + 3)])
            q.post(idx, used, CAP if (idx >= 117 and j == 1 and q is fl) else 2)
    mark('p2end')
    fv.flush()
    fl.flush()
    mark('prerb')
    e.wait(vm=['rb'])
    mark('rb')
    for i in range(6): a('v_cvt_pk_bf16_f32 v%d, v%d, v%d' % (G1 + i, KV + 2 * i, KV + 2 * i + 1))
    e('ds_write_b64 v%d, v[%d:%d]' % (vKW, G1, G1 + 1))
    e('ds_write_b64 v%d, v[%d:%d] offset:1024' % (vKW, G1 + 2, G1 + 3))
    e('ds_write_b64 v%d, v[%d:%d] offset:4096' % (vZW, G1 + 4, G1 + 5))
    p = qphi(3)
    for x in p[:16]: a(x)
    e.wait_all(lds=True)
    a('s_barrier')
    for h2 in range(2):
        for eb in range(2): e('ds_read_b128 %s, v%d offset:%d' % (vr(WR + 12 * h2 + 4 * eb, 4), vKR, 2048 * h2 + 1024 * eb))
        e('ds_read_b128 %s, v%d offset:%d' % (vr(WR + 12 * h2 + 8, 4), vZR, 4096 + 64 * h2))
    for x in p[16:]: a(x)
    e.wait_all(lds=True)
    OD = G1
    for h2 in range(2):
        for tb in range(2):
            for j in (2, 0, 1):
                d = OD + 12 * (2 * h2 + tb) + 4 * j
                a('v_mfma_f32_16x16x32_bf16 %s, %s, %s, 0' % (vr(d, 4), vr(WR + 12 * h2 + 4 * j, 4), vr(PQ + 8 * tb + 4 * h2, 4)))
    a('s_nop 2')
    for i in range(4): a('v_add_f32 v%d, s%d, v%d' % (OD + 12 * i + 8, S_E, OD + 12 * i + 8))
    for i in range(4): a('v_rcp_f32 v%d, v%d' % (OD + 12 * i + 8, OD + 12 * i + 8))
    for i in range(4):
        d = OD + 12 * i
        r, md = bc(d + 8, 1, 2)
        for q in range(0, 8, 2): a(pk('mul', d + q, d + q, r, None, md))
        for q in range(4): a('v_cvt_pk_bf16_f32 v%d, v%d, v%d' % (4 * i + q, d + 2 * q, d + 2 * q + 1))
        e('buffer_store_dwordx4 %s, v%d, s[%d:%d], 0 offen offset:%d %s' % (vr(4 * i, 4), vX16, SRD_KV, SRD_KV + 3, 1024 * i, opt.get('sflag', '')))
    if stamp:
        a('s_waitcnt vmcnt(0)')
        st.take(a)
        st.flush(a, P_WS, 's2', 16, 'v%d' % vTID)
    a.label(end)
    a('s_endpgm')
    kernel_desc(a, name, 512, 102, 256)
```

```python
from gemm import *
from kern_a2 import Stream, Fill, pk, bc, unpk
from kern_ace import swz_src, swz_rd
from kern_small import gu_touch

C_XT = 131072
C_WB = C_XT + 16384
def c3_lds(opt): return C_WB + 2048

def kern_c3(a, name, kidx, stamp=False, opt=None):
    opt = opt or {}
    st = Stamps(stamp, kidx)
    e = Stream(a)
    marks = opt.get('marks', ['go', 'loopend', 'stored'])
    def mark(x):
        if x in marks: st.take(a)
    kernel_begin(a, name)
    end = a.newlabel('Lend')
    a('s_cmp_ge_u32 s2, 256')
    a('s_cbranch_scc1 %s' % end)
    load_ptrs(a)
    st.take(a)
    S_RT, S_CT, S_T0, S_T1, S_WV, S_PN, S_SL = 25, 26, 27, 28, 29, 30, 31
    vTID, vL, vX, vD, vRdB, vWB, vTok, vT, vJ, vXs, vXR, vSt = 40, 41, 42, 44, 48, 56, 57, 58, 59, 60, 64, 43
    RES, SC, T, WR = 68, 84, 88, 96
    a('v_mov_b32 v%d, v0' % vTID)
    wave_id(a, 1)
    a('v_and_b32 v%d, 63, v0' % vL)
    a('v_lshlrev_b32 v%d, 4, v%d' % (vX, vL))
    a('s_and_b32 s%d, s2, 1' % S_RT)
    a('s_lshl_b32 s%d, s%d, 3' % (S_RT, S_RT))
    a('s_and_b32 s%d, s2, 2' % S_T0)
    a('s_lshl_b32 s%d, s%d, 1' % (S_T0, S_T0))
    a('s_add_u32 s%d, s%d, s%d' % (S_RT, S_RT, S_T0))
    a('s_bfe_u32 s%d, s2, 0x20003' % S_T0)
    a('s_add_u32 s%d, s%d, s%d' % (S_RT, S_RT, S_T0))
    a('s_lshl_b32 s%d, s%d, 2' % (S_SL, S_T0))
    a('s_lshr_b32 s%d, s2, 5' % S_T0)
    a('s_lshl_b32 s%d, s%d, 1' % (S_T1, S_T0))
    a('s_add_u32 s%d, s%d, s%d' % (S_SL, S_SL, S_T1))
    a('s_bfe_u32 s%d, s2, 0x10002' % S_CT)
    a('s_add_u32 s%d, s%d, s%d' % (S_SL, S_SL, S_CT))
    a('s_and_b32 s%d, s%d, %d' % (S_SL, S_SL, 15 if opt.get('rot', 1) else 0))
    a('s_lshl_b32 s%d, s%d, 3' % (S_CT, S_CT))
    a('s_add_u32 s%d, s%d, s%d' % (S_CT, S_CT, S_T0))
    a('s_lshl_b32 s%d, s%d, 2' % (S_PN, S_RT))
    a('s_add_u32 s%d, s%d, s%d' % (S_PN, S_PN, S_WAVE))
    swz_src(a, vL, 2048, 2, 3, 4)
    a('s_lshl_b32 s%d, s%d, 15' % (S_T0, S_WAVE))
    a('v_add_u32 v%d, s%d, v2' % (vD, S_T0))
    a('v_add_u32 v%d, %d, v%d' % (vD + 1, 8 * 2048 - 1024, vD))
    a('s_lshl_b32 s%d, s%d, 11' % (S_WV, S_WAVE))
    a('s_lshl_b32 s%d, s%d, 17' % (S_WOFF, S_SL))
    a('s_lshl_b32 s%d, s%d, 12' % (S_XOFF, S_SL))
    a('s_lshl_b32 s%d, s%d, 7' % (S_T1, S_CT))
    a('s_lshl_b32 s58, s%d, 16' % S_PN)
    a('s_add_u32 s%d, s58, %d' % (S_T0, WS_O))
    a('s_waitcnt lgkmcnt(0)')
    srd_off(a, SRD_X0, P_WS, 's%d' % S_T0, 65536)
    a('s_add_u32 s%d, s%d, s%d' % (SRD_W, P_WO, S_T1))
    a('s_addc_u32 s%d, s%d, 0' % (SRD_W + 1, P_WO + 1))
    a('s_sub_u32 s%d, %d, s%d' % (SRD_W + 2, 1024 * 2048, S_T1))
    a('s_mov_b32 s%d, 0x20000' % (SRD_W + 3))
    accb = lambda tb, cb: 4 * (tb * 4 + cb) if cb < 4 else 32 + 4 * tb
    xr = lambda s, ks, tb: ar(16 * s + 8 * ks + 4 * tb, 4)
    def stage_ops(s):
        o = []
        for j in range(2):
            pre = []
            if j == 0:
                if s: pre += ['s_add_u32 s%d, s%d, %d' % (S_WOFF, S_WOFF, 1 << 17), 's_and_b32 s%d, s%d, 0x1fffff' % (S_WOFF, S_WOFF)]
                pre.append('s_add_u32 m0, s%d, %d' % (S_WV, s * 8192))
            o.append((pre, 'buffer_load_dwordx4 v%d, s[%d:%d], s%d offen offset:%d lds' % (vD + j, SRD_W, SRD_W + 3, S_WOFF, 1024 * j), ('W', s)))
        for i in range(4):
            pre = ['s_lshr_b32 s%d, s%d, 5' % (S_XOFF, S_WOFF)] if s and i == 0 else []
            o.append((pre, 'buffer_load_dwordx4 %s, v%d, s[%d:%d], s%d offen offset:%d' % (xr(s, i >> 1, i & 1), vX, SRD_X0, SRD_X0 + 3, S_XOFF, i * 1024), ('X', s)))
        return o
    ops = sum([stage_ops(s) for s in range(16)], [])
    def issue(it):
        for p in it[0]: a(p)
        if it[0] and 'm0' in it[0][-1]: a('s_nop 0')
        e(it[1], it[2])
    for it in ops[:6]: issue(it)
    srd_off(a, SRD_X1, P_WS, WS_SMALL, SM_BYTES)
    a('s_and_b32 s59, s%d, 1' % S_WAVE)
    a('s_lshl_b32 s59, s59, 10')
    a('s_add_u32 m0, s59, %d' % C_WB)
    a('s_lshl_b32 s%d, s%d, 7' % (S_T0, S_SL))
    a('s_add_u32 s59, s59, s%d' % S_T0)
    a('v_add_u32 v2, s59, v%d' % vX)
    a('v_and_b32 v2, 0x7ff, v2')
    a('s_mov_b32 s59, %d' % SM_WBAR)
    e('buffer_load_dwordx4 v2, s[%d:%d], s59 offen lds' % (SRD_X1, SRD_X1 + 3), ('W', 0))
    NPRO = opt.get('npro', 14)
    for it in ops[6:NPRO]: issue(it)
    ops = ops[NPRO:]
    a('s_lshl_b32 s59, s%d, 12' % S_CT)
    a('s_add_u32 s59, s59, s58')
    a('s_add_u32 s59, s59, %d' % WS_H)
    srd_off(a, SRD_A, P_WS, 's59', 4096)
    a('s_add_u32 s59, s58, s%d' % S_T1)
    srd_off(a, SRD_B, P_X, 's59', 31 * 2048 + 128)
    a('s_lshl_b32 s62, s%d, 7' % S_PN)
    a('s_add_u32 s63, s62, %d' % SM_MX)
    a('s_mov_b32 s60, 0xffff0000')
    a('s_lshl_b32 s61, s%d, 12' % S_WAVE)
    a('s_add_u32 s61, s61, %d' % C_XT)
    a('''v_lshrrev_b32 v2, 3, v%d
    v_lshlrev_b32 v3, 11, v2
    v_lshrrev_b32 v4, 4, v%d
    v_and_b32 v5, 7, v%d
    v_xor_b32 v5, v4, v5
    v_lshl_add_u32 v%d, v5, 4, v3''' % (vL, vL, vL, vXs))
    a('v_xor_b32 v3, 64, v%d' % vXs)
    a('v_add_u32 v%d, %d, v3' % (vXs + 1, 8 * 2048 - 1024))
    a('v_add_u32 v%d, %d, v%d' % (vXs + 2, 2 * (8 * 2048 - 1024), vXs))
    a('v_add_u32 v%d, %d, v3' % (vXs + 3, 3 * (8 * 2048 - 1024)))
    a('v_and_b32 v2, 15, v%d' % vL)
    a('v_lshlrev_b32 v%d, 2, v2' % vTok)
    a('v_lshrrev_b32 v3, 1, v2')
    a('v_lshrrev_b32 v5, 5, v%d' % vL)
    a('v_xor_b32 v3, v3, v5')
    a('v_lshlrev_b32 v3, 4, v3')
    a('v_lshl_add_u32 v3, v2, 7, v3')
    a('v_and_b32 v2, 1, v4')
    a('v_lshl_add_u32 v3, v2, 3, v3')
    a('v_add_u32 v%d, s61, v3' % vXR)
    for cb in range(1, 4): a('v_xor_b32 v%d, %d, v%d' % (vXR + cb, 32 * cb, vXR))
    a('v_lshlrev_b32 v4, 4, v4')
    a('v_add_u32 v%d, %d, v4' % (vWB, C_WB))
    a('v_lshlrev_b32 v5, 20, v5')
    a('v_lshl_add_u32 v%d, v%d, 2, v5' % (vSt, vL))
    swz_rd(a, vL, vRdB, 4, 5)
    for u in range(4): a('v_add_u32 v%d, 0x10000, v%d' % (vRdB + 4 + u, vRdB + u))
    a('v_lshlrev_b32 v%d, 7, v%d' % (vT, vL))
    late = []
    for i in range(4):
        late.append((['s_mov_b32 m0, s61'] if i == 0 else [], 'buffer_load_dwordx4 v%d, s[%d:%d], 0 offen offset:%d lds' % (vXs + i, SRD_B, SRD_B + 3, 1024 * i), 'res'))
    for tb in range(2):
        late.append(([], 'buffer_load_dword v%d, v%d, s[%d:%d], s63 offen offset:%d' % (SC + 2 * tb, vTok, SRD_X1, SRD_X1 + 3, 64 * tb), 'res'))
    pos = 6 * opt.get('res_at', 12) - NPRO
    ops = ops[:pos] + late + ops[pos:]
    if opt.get('code'):
        ops.insert(6 * 5 - NPRO, ([], code_touch(a, opt['code'], 'Lcode_end', vT, vJ, 96, 100), None))
    if opt.get('gu'):
        ops.append(([], gu_touch(a, opt['gu'], vT, vJ, 58, 59), None))
    a.raw(';@warm %s' % name)
    D = opt.get('D', 4); RING = 10
    NF = 160
    def reads(gf):
        s, f = divmod(gf, 10); ks, cb = divmod(f, 5); w = WR + 4 * (gf % RING)
        if cb == 4: return ['ds_read_b128 %s, v%d offset:%d' % (vr(w, 4), vWB, (2 * s + ks) * 64)]
        o = s * 8192 + ks * 4096
        return ['ds_read_b64_tr_b16 %s, v%d offset:%d' % (vr(w + 2 * h, 2), vRdB + cb + 4 * (o >> 16), (o & 0xffff) + 2048 * h) for h in range(2)]
    span = opt.get('span', 132)
    sched = {}
    for i, it in enumerate(ops): sched.setdefault(2 * ((i * span) // len(ops)) + 1, []).append(it)
    fl = Fill(e)
    m = [lambda: e.wait(vm=['res'])]
    m += [('ds_read_b64 v[%d:%d], v%d offset:%d' % (RES + 2 * (tb * 4 + cb), RES + 2 * (tb * 4 + cb) + 1, vXR + cb, 2048 * tb), 'xr') for tb in range(2) for cb in range(4)]
    fl.add(m, 2 * span + 8)
    e.wait(vm=[('W', 0)])
    a('s_barrier')
    for gf in range(D):
        for r in reads(gf): e(r, ('w', gf))
    e.wait(lds=[('w', 1)])
    mark('go')
    for gf in range(NF):
        s, f = divmod(gf, 10); ks, cb = divmod(f, 5)
        for tb in range(2):
            idx = 2 * gf + tb
            c = vr(accb(tb, cb), 4)
            a('v_mfma_f32_16x16x32_bf16 %s, %s, %s, %s' % (c, vr(WR + 4 * (gf % RING), 4), xr(s, ks, tb), '0' if gf < 5 else c))
            used = 0
            if tb == 0:
                for it in sched.get(idx + 1, [])[:1]:
                    for p in it[0]: a(p)
                if idx + 1 not in sched: fl.pre(idx)
                if gf + D < NF:
                    for r in reads(gf + D): e(r, ('w', gf + D))
                    used = 2
            else:
                if gf & 1 and gf + 1 < NF:
                    vm = []; bar = False
                    if (gf + 1) % 10 == 0: vm.append(('X', s + 1))
                    if (gf + 1 + D) % 10 == 0 and gf + 1 + D < NF: vm.append(('W', s + 1)); bar = True
                    assert not any(g2 >= idx and it[2] in vm for g2, l in sched.items() for it in l), (gf, vm)
                    e.wait(lds=[('w', gf + 2)], vm=vm)
                    if bar: a('s_barrier')
                for i, it in enumerate(sched.get(idx, [])):
                    if i: issue(it)
                    else: e(it[1], it[2])
                    used = 2
            fl.post(idx, used)
    mark('loopend')
    fl.flush()
    sf = opt.get('sflag', '')
    e.wait(lds=['xr'])
    for i in range(16):
        a('v_lshlrev_b32 v%d, 16, v%d' % (WR + 2 * i, RES + i))
        a('v_and_b32 v%d, s60, v%d' % (WR + 2 * i + 1, RES + i))
    for tb in range(2): a('v_add_f32 v%d, v%d, v%d' % (SC + 2 * tb, SC + 2 * tb, accb(tb, 4)))
    for tb in range(2):
        for i in range(8 * tb, 8 * tb + 8):
            a(pk('add', WR + 2 * i, WR + 2 * i, SC + 2 * tb, None, 'op_sel_hi:[1,0] neg_lo:[0,1] neg_hi:[0,1]'))
            a(pk('add', 2 * i, 2 * i, WR + 2 * i))
        for i in range(8 * tb, 8 * tb + 8): a('v_cvt_pk_bf16_f32 v%d, v%d, v%d' % (RES + i, 2 * i, 2 * i + 1))
        for kk in range(2):
            r = RES + 4 * (tb * 2 + kk)
            e('buffer_store_dwordx4 v[%d:%d], v%d, s[%d:%d], 0 offen offset:%d %s' % (r, r + 3, vX, SRD_A, SRD_A + 3, kk * 2048 + tb * 1024, sf))
    for tb in range(2):
        s = T + 2 * tb
        a(pk('mul', s, 16 * tb, 16 * tb))
        for i in range(1, 8): a(pk('fma', s, 16 * tb + 2 * i, 16 * tb + 2 * i, s))
        a('v_add_f32 v%d, v%d, v%d' % (s, s, s + 1))
    a('s_lshl_b32 s58, s%d, 13' % S_CT)
    a('s_add_u32 s58, s58, s62')
    a('v_permlane16_swap_b32 v%d, v%d' % (T, T + 2))
    a('v_permlane16_swap_b32 v%d, v%d' % (SC, SC + 2))
    a('v_add_f32 v%d, v%d, v%d' % (T, T, T + 2))
    a('v_mov_b32 v%d, v%d' % (T + 1, T))
    a('s_lshl_b32 s59, s%d, 20' % S_CT)
    a('s_add_u32 s59, s59, s62')
    a('v_permlane32_swap_b32 v%d, v%d' % (T, T + 1))
    a('s_add_u32 s59, s59, %d' % SM_MH)
    a('v_add_f32 v%d, v%d, v%d' % (T, T, T + 1))
    e('buffer_store_dword v%d, v%d, s[%d:%d], s58 offen' % (T, vSt, SRD_X1, SRD_X1 + 3))
    e('buffer_store_dword v%d, v%d, s[%d:%d], s59 offen' % (SC, vSt, SRD_X1, SRD_X1 + 3))
    if stamp:
        mark('stored')
        a('s_waitcnt vmcnt(0)')
        st.take(a)
        st.flush(a, P_WS, 's2', 0, 'v%d' % vTID)
    a.label(end)
    a('s_endpgm')
    kernel_desc(a, name, 136 + 256, 102, 136)
```

```python
from gemm import *
from kern_a2 import Stream, Fill, pk, bc, allsum4, unpk

D_SB = 28672
D_U = 5
D_TAB = D_SB * D_U
def d3_lds(opt): return D_TAB + 1024

def kern_d3(a, name, kidx, stamp=False, opt=None):
    opt = opt or {}
    U = D_U
    st = Stamps(stamp, kidx)
    e = Stream(a)
    marks = opt.get('marks', ['go', 'tail', 'loopend'])
    def mark(x):
        if x in marks: st.take(a)
    kernel_begin(a, name)
    end = a.newlabel('Lend')
    a('s_cmp_ge_u32 s2, 256')
    a('s_cbranch_scc1 %s' % end)
    load_ptrs(a)
    st.take(a)
    S_RB, S_FT, S_T0, S_T1, S_WVO, S_PN, S_ODD = 25, 26, 27, 28, 29, 30, 31
    S_PR, S_SG, S_SO, S_TO = 58, 59, 60, 61
    vTID, vL, vX, vRdB, vD = 224, 225, 226, 227, 230
    vT, vJ, vA, vS, vTW, vTR = 237, 238, 240, 244, 245, 246
    T = 248
    AST = 200
    a('v_mov_b32 v%d, v0' % vTID)
    wave_id(a, 1)
    a('v_and_b32 v%d, 63, v0' % vL)
    a('v_lshlrev_b32 v%d, 4, v%d' % (vX, vL))
    if opt.get('map', 0) == 0:
        a('''s_and_b32 s%d, s2, 1
        s_lshl_b32 s%d, s%d, 2
        s_bfe_u32 s%d, s2, 0x20003
        s_add_u32 s%d, s%d, s%d
        s_bfe_u32 s%d, s2, 0x20001
        s_lshl_b32 s%d, s%d, 3
        s_lshr_b32 s%d, s2, 5
        s_add_u32 s%d, s%d, s%d''' % (S_RB, S_RB, S_RB, S_T0, S_RB, S_RB, S_T0, S_FT, S_FT, S_FT, S_T0, S_FT, S_FT, S_T0))
    else:
        a('s_bfe_u32 s%d, s2, 0x30003' % S_RB)
        a('s_and_b32 s%d, s2, 7' % S_FT)
        a('s_lshl_b32 s%d, s%d, 2' % (S_FT, S_FT))
        a('s_lshr_b32 s%d, s2, 6' % S_T0)
        a('s_add_u32 s%d, s%d, s%d' % (S_FT, S_FT, S_T0))
    a('s_and_b32 s%d, s%d, 1' % (S_ODD, S_FT))
    a('s_lshl_b32 s%d, s%d, 3' % (S_PN, S_RB))
    a('s_lshl_b32 s%d, s%d, 1' % (S_T0, S_WAVE))
    a('s_add_u32 s%d, s%d, s%d' % (S_PN, S_PN, S_T0))
    a('s_and_b32 s%d, s%d, 1' % (S_T0, S_WAVE))
    a('s_mul_i32 s%d, s%d, %d' % (S_PR, S_T0, 32 * 7168))
    a('s_lshl_b32 s%d, s%d, 1' % (S_SG, S_ODD))
    def dsrc(i):
        a('v_add_u32 v2, %d, v%d' % (64 * i, vL))
        a('v_mul_u32_u24 v3, 4682, v2')
        a('v_lshrrev_b32 v3, 16, v3')
        a('v_mad_i32_i24 v2, v3, -14, v2')
        a('v_add_u32 v2, s%d, v2' % S_SG)
        a('v_subrev_u32 v4, 14, v2')
        a('v_min_u32 v2, v2, v4')
        a('v_mul_u32_u24 v3, 7168, v3')
        a('v_lshl_add_u32 v3, v2, 4, v3')
        if i & 3:
            a('v_subrev_u32 v3, %d, v3' % (1024 * (i & 3)))
        a('v_add_u32 v%d, s%d, v3' % (vD + i, S_PR))
    for i in range(3): dsrc(i)
    a('s_mul_i32 s%d, s%d, 7168' % (S_WVO, S_WAVE))
    a('s_mul_i32 s%d, s%d, 224' % (S_T1, S_FT))
    a('s_lshl_b32 s%d, s%d, 16' % (S_T0, S_PN))
    a('s_add_u32 s%d, s%d, %d' % (S_T0, S_T0, WS_H))
    a('s_mov_b32 s%d, 0' % S_WOFF)
    a('s_mov_b32 s%d, 0' % S_XOFF)
    a('s_waitcnt lgkmcnt(0)')
    srd_off(a, SRD_X0, P_WS, 's%d' % S_T0, 65536)
    a('s_add_u32 s%d, s%d, 65536' % (S_T0, S_T0))
    srd_off(a, SRD_X1, P_WS, 's%d' % S_T0, 65536)
    a('s_cmp_lt_u32 s%d, 2' % S_WAVE)
    a('s_cselect_b32 s60, s%d, s%d' % (P_WG, P_WU))
    a('s_cselect_b32 s61, s%d, s%d' % (P_WG + 1, P_WU + 1))
    a('s_add_u32 s%d, s60, s%d' % (SRD_W, S_T1))
    a('s_addc_u32 s%d, s61, 0' % (SRD_W + 1))
    a('s_sub_u32 s%d, %d, s%d' % (SRD_W + 2, 1024 * 7168, S_T1))
    a('s_mov_b32 s%d, 0x20000' % (SRD_W + 3))

    accb = lambda tb, cb: 4 * (tb * 14 + cb)
    xr = lambda s, ks, tb: ar(32 * (s % U) + 16 * ks + 4 * tb, 4)
    WRA = 160
    def stage_ops(s):
        w = []
        for i in range(7):
            pre = []
            if i == 0 and s: pre.append('s_add_u32 s%d, s%d, %d' % (S_WOFF, S_WOFF, 64 * 7168))
            if i in (0, 4): pre.append('s_add_u32 m0, s%d, %d' % (S_WVO, (s % U) * D_SB + 1024 * i))
            w.append((pre, 'buffer_load_dwordx4 v%d, s[%d:%d], s%d offen offset:%d %s lds' % (vD + i, SRD_W, SRD_W + 3, S_WOFF, 1024 * (i & 3), opt.get('wflag', '')), ('W', s)))
        x = []
        for ks in range(2):
            for tb in range(4):
                p, t = divmod(tb, 2)
                pre = ['s_add_u32 s%d, s%d, 4096' % (S_XOFF, S_XOFF)] if s and ks == 0 and tb == 0 else []
                x.append((pre, 'buffer_load_dwordx4 %s, v%d, s[%d:%d], s%d offen offset:%d' % (xr(s, ks, tb), vX, SRD_X0 + 4 * p, SRD_X0 + 4 * p + 3, S_XOFF, (2 * ks + t) * 1024), ('X', s, ks)))
        if s == 0: return x[:4] + w + x[4:]
        return w + x
    ops = sum([stage_ops(s) for s in range(16)], [])
    def issue(it):
        for p in it[0]: a(p)
        if it[0] and 'm0' in it[0][-1]: a('s_nop 0')
        e(it[1], it[2])
    NPRO = opt.get('npro', 21)
    for i in range(NPRO):
        if 7 <= i < 11: dsrc(i - 4)
        issue(ops[i])
    ops = ops[NPRO:]
    a('''v_lshrrev_b32 v2, 2, v%d
    v_mul_u32_u24 v2, 224, v2
    v_and_b32 v3, 3, v%d
    v_lshl_add_u32 v%d, v3, 3, v2''' % (vL, vL, vRdB))
    a('v_add_u32 v%d, %d, v%d' % (vRdB + 1, 2 * D_SB, vRdB))
    a('v_add_u32 v%d, %d, v%d' % (vRdB + 2, 4 * D_SB, vRdB))
    a('v_lshlrev_b32 v%d, 7, v%d' % (vT, vL))
    SRD_T2, S_GU, S_WD = 92, 62, 63
    a('s_bitcmp1_b32 s2, 0')
    a('s_cselect_b32 s%d, s%d, s%d' % (SRD_T, P_WU, P_WG))
    a('s_cselect_b32 s%d, s%d, s%d' % (SRD_T + 1, P_WU + 1, P_WG + 1))
    a('s_mov_b32 s%d, s%d' % (SRD_T2, P_WD))
    a('s_mov_b32 s%d, s%d' % (SRD_T2 + 1, P_WD + 1))
    a('s_cmp_eq_u32 s%d, 0' % S_WAVE)
    a('s_cselect_b32 s%d, %d, 0' % (SRD_T + 2, 1024 * 7168))
    a('s_mov_b32 s%d, s%d' % (SRD_T2 + 2, SRD_T + 2))
    a('s_mov_b32 s%d, 0x20000' % (SRD_T + 3))
    a('s_mov_b32 s%d, 0x20000' % (SRD_T2 + 3))
    a('s_lshr_b32 s%d, s2, 1' % S_GU)
    a('s_lshl_b32 s%d, s%d, 13' % (S_GU, S_GU))
    a('s_lshl_b32 s%d, s2, 13' % S_WD)
    srd_off(a, SRD_A, P_WS, WS_SMALL, SM_BYTES)
    a('v_and_b32 v2, 15, v%d' % vL)
    a('v_lshrrev_b32 v3, 4, v%d' % vL)
    a('v_lshlrev_b32 v4, 15, v3')
    a('v_lshl_add_u32 v%d, v2, 4, v4' % vS)
    a('s_lshl_b32 s%d, s%d, 8' % (S_T0, S_WAVE))
    a('s_add_u32 s%d, s%d, %d' % (S_T0, S_T0, D_TAB))
    a('v_lshl_add_u32 v%d, v2, 4, s%d' % (vTW, S_T0))
    a('v_lshl_add_u32 v%d, v2, 2, s%d' % (vTR, S_T0))
    a('s_lshl_b32 s%d, s%d, 7' % (S_SO, S_PN))
    a('s_mul_i32 s%d, s%d, %d' % (S_T0, S_PN, 224 * 1024))
    a('s_add_u32 s%d, s%d, %d' % (S_T0, S_T0, WS_HH))
    srd_off(a, SRD_B, P_WS, 's%d' % S_T0, 2 * 224 * 1024)
    a('s_mul_i32 s%d, s%d, 7' % (S_PR, S_FT))
    a('s_add_u32 s%d, s%d, s%d' % (S_PR, S_PR, S_ODD))
    a('s_lshl_b32 s%d, s%d, 10' % (S_PR, S_PR))
    a('s_mul_i32 s%d, s%d, %d' % (S_SG, S_ODD, 8 * 1024 - 8))
    a('s_sub_u32 s%d, s%d, s%d' % (S_SG, S_PR, S_SG))
    a('s_add_u32 s%d, s%d, %d' % (S_SG, S_SG, 6 * 1024))
    ctouch = None
    if opt.get('code'): ctouch = code_touch(a, opt['code'], 'Lcode_end', vT, vJ, 96, 100)

    NT = 2
    order = [(s, ks, cb) for s in range(16 - NT) for ks in range(2) for cb in range(14)]
    NF0 = len(order)
    order += [(s, ks, cb) for c in range(7) for cb in (c, 7 + c) for s in range(16 - NT, 16) for ks in range(2)]
    NF = len(order)
    D = opt.get('D', 4)
    def reads(gf):
        s, ks, cb = order[gf]; u = s % U; w = WRA + 4 * (gf % 7)
        return ['ds_read_b64_tr_b16 %s, v%d offset:%d' % (ar(w + 2 * h, 2), vRdB + (u >> 1),
                                                        (u & 1) * D_SB + (cb // 7) * 14336 + (ks * 32 + h * 16) * 224 + (cb % 7) * 32) for h in range(2)]
    extra = []
    for i in range(4):
        extra.append((opt.get('st_at', 60) + 2 * i, (['s_add_u32 s%d, s%d, %d' % (S_T1, S_SO, 8192 * i)],
                      'buffer_load_dwordx4 %s, v%d, s[%d:%d], s%d offen' % (ar(AST + 4 * i, 4), vS, SRD_A, SRD_A + 3, S_T1), 'st')))
    for g, kind, rnd in opt.get('touch', []):
        sd, so, n = (SRD_T, S_GU, 128) if kind == 'gu' else (SRD_T2, S_WD, 256)
        extra.append((g, (['s_add_u32 s%d, s%d, %d' % (S_TO, so, rnd * n * 8192)],
                          'buffer_load_dword v%d, v%d, s[%d:%d], s%d offen' % (vJ, vT, sd, sd + 3, S_TO), None)))
    if ctouch: extra.append((opt.get('code_at', 340), ([], ctouch, None)))
    span = opt.get('span', 28 * 13 + 14)
    sched = {}
    allops = sorted([(i * span / len(ops), 1, it) for i, it in enumerate(ops)] + [(g, 0, it) for g, it in extra], key=lambda x: x[:2])
    g = -1
    for pos, _, it in allops:
        g = max(g + 1 + (len(it[0]) - 1) // 3 if len(it[0]) > 2 else g + 1, int(pos))
        sched[g] = it
        if it[2] and it[2][0] in 'WX': assert g // 28 >= it[2][1] - (U - 2), (g, it[2])
    pres = {}
    for g, it in sched.items():
        slot = 4 * g
        for p in reversed(it[0]):
            while slot % 4 == 3 or (slot % 4 == 1 and slot // 4 in sched) or len(pres.get(slot, [])) >= (3 if slot % 4 == 1 else 1): slot -= 1
            prev = max([x for x in sched if x < g], default=-1)
            if slot <= 4 * prev + 1: slot = 4 * prev + 2 if prev >= 0 else 0
            pres.setdefault(slot, []).insert(0, p)

    fl = Fill(e)
    m = [lambda: e.wait(vm=['st'])]
    for r in range(4): m.append('v_accvgpr_read_b32 v%d, a%d' % (T + r, AST + r))
    for i in range(1, 4):
        m += ['v_accvgpr_read_b32 v%d, a%d' % (T + 4 + r, AST + 4 * i + r) for r in range(4)]
        m += ['v_add_f32 v%d, v%d, v%d' % (T + r, T + r, T + 4 + r) for r in range(4)]
    m += allsum4([T, T + 1, T + 2, T + 3], T + 4)
    for r in range(4):
        m += ['v_mov_b32 v%d, 0x%x' % (T + 4 + r, f2u(1e-5)), 'v_fmac_f32 v%d, 0x%x, v%d' % (T + 4 + r, f2u(1.0 / 1024), T + r)]
    m += ['v_rsq_f32 v%d, v%d' % (T + r, T + 4 + r) for r in range(4)]
    m += ['v_lshlrev_b32 v%d, 16, v%d' % (T + 4, vL), 'v_and_b32 v%d, 0x300000, v%d' % (T + 4, T + 4),
          'v_and_b32 v%d, 0xff, v%d' % (T + 5, vX), 'v_or_b32 v%d, v%d, v%d' % (T + 4, T + 4, T + 5),
          ('ds_write_b128 v%d, v[%d:%d]' % (vTW, T, T + 3), 'tw'),
          lambda: (a('s_lshl_b32 s%d, s%d, 20' % (S_T0, S_FT)), a('s_add_u32 s%d, s%d, s%d' % (S_T0, S_T0, S_SO)), a('s_add_u32 s%d, s%d, %d' % (S_T0, S_T0, SM_RSTD))),
          'buffer_store_dwordx4 v[%d:%d], v%d, s[%d:%d], s%d offen' % (T, T + 3, T + 4, SRD_A, SRD_A + 3, S_T0)]
    m += [('ds_read_b32 v%d, v%d offset:%d' % (vA + tb, vTR, 64 * tb), 'tr') for tb in range(4)]
    fl.add(m, 4 * opt.get('st_at', 60) + 160)
    fl.add([lambda: e.wait(lds=['tr'])] + ['v_mul_f32 v%d, 0x%x, v%d' % (vA + tb, f2u(-LOG2E), vA + tb) for tb in range(4)], 4 * opt.get('st_at', 60) + 260)
    sf = opt.get('sflag', '')
    def sig(c, packed=False):
        o = []
        for tb in range(4):
            b = accb(tb, c)
            x, md = bc(vA + tb, 1, 2)
            o += [pk('mul', b + r, b + r, x, None, md) for r in (0, 2)]
        for tb in range(4): o += ['v_exp_f32 v%d, v%d' % (accb(tb, c) + r, accb(tb, c) + r) for r in range(4)]
        for tb in range(4): o += ['v_add_f32 v%d, 1.0, v%d' % (accb(tb, c) + r, accb(tb, c) + r) for r in range(4)]
        for tb in range(4): o += ['v_rcp_f32 v%d, v%d' % (accb(tb, c) + r, accb(tb, c) + r) for r in range(4)]
        return o
    def fin(c):
        o = []
        for tb in range(4):
            b = accb(tb, c); u = accb(tb, 7 + c)
            o += [pk('mul', b + r, b + r, u + r) for r in (0, 2)]
        for tb in range(4):
            b = accb(tb, c); d = accb(tb, 7 + (c & ~1)) + 2 * (c & 1)
            o += ['v_cvt_pk_bf16_f32 v%d, v%d, v%d' % (d + r, b + 2 * r, b + 2 * r + 1) for r in range(2)]
            p, t = divmod(tb, 2); u = accb(tb, 7 + (c & ~1))
            if c & 1:
                if t == 0: o.append('s_add_u32 s%d, s%d, %d' % (S_T1, S_PR, p * 224 * 1024 + (c >> 1) * 2048))
                o.append('buffer_store_dwordx4 v[%d:%d], v%d, s[%d:%d], s%d offen offset:%d %s' % (u, u + 3, vX, SRD_B, SRD_B + 3, S_T1, 1024 * t, sf))
            elif c == 6:
                if t == 0: o.append('s_add_u32 s%d, s%d, %d' % (S_T1, S_SG, p * 224 * 1024))
                o.append('buffer_store_dwordx2 v[%d:%d], v%d, s[%d:%d], s%d offen offset:%d' % (u, u + 1, vX, SRD_B, SRD_B + 3, S_T1, 1024 * t))
        return o
    B0 = 4 * NF0; BL = 8 * NT
    for c in range(7):
        fl.add(unpk(sig(c)), B0 + BL * (2 * c + 1) + 6)
        if c < 6: fl.add(unpk(fin(c)), B0 + BL * (2 * c + 2) + 6)
    CAP = opt.get('cap', 5)

    e.wait(vm=[('W', 0)])
    a('s_barrier')
    for gf in range(D):
        for r in reads(gf): e(r, ('w', gf))
    e.wait(lds=[('w', 0)])
    mark('go')
    for gf in range(NF):
        s, ks, cb = order[gf]
        if gf == NF0: mark('tail')
        if gf < NF0 and gf % 28 == 0: mark('s%d' % s)
        rd = reads(gf + D) if gf + D < NF else []
        for tb in range(4):
            idx = 4 * gf + tb
            c = vr(accb(tb, cb), 4)
            a('v_mfma_f32_16x16x32_bf16 %s, %s, %s, %s' % (c, ar(WRA + 4 * (gf % 7), 4), xr(s, ks, tb), '0' if gf < 14 else c))
            used = 0
            cap = CAP if gf >= NF0 else 2
            if idx in pres:
                for p in pres[idx]: a(p)
                used += len(pres[idx]) - 1
            elif tb < 3 and not (tb == 1 and gf in sched): fl.pre(idx)
            if tb in (0, 2) and rd:
                e(rd[tb >> 1], ('w', gf + D)); used += 1
            if tb == 1 and gf in sched:
                e(sched[gf][1], sched[gf][2]); used = cap
            if tb == 3 and gf + 1 < NF:
                ns, nks, _ = order[gf + 1]
                vm = [('X', ns, nks)]
                bar = False
                if gf + 1 + D < NF:
                    s2 = order[gf + 1 + D][0]
                    if gf + 1 + D == NF0: vm.append(('W', 15)); bar = True
                    elif gf + 1 + D < NF0 and (gf + 1 + D) % 28 == 0: vm.append(('W', s2)); bar = True
                assert not any(g2 > gf and it[2] in vm for g2, it in sched.items()), (gf, vm)
                e.wait(lds=[('w', gf + 1)], vm=vm)
                if bar: a('s_barrier'); used = 1
            fl.post(idx, used, cap)
    mark('loopend')
    fl.flush()
    a('s_nop 7')
    for x in fin(6): e(x)
    if stamp:
        a('s_waitcnt vmcnt(0)')
        st.take(a)
        st.flush(a, P_WS, 's2', 0, 'v%d' % vTID)
    a.label(end)
    a('s_endpgm')
    kernel_desc(a, name, 256 + 216, 102, 256)
```

```python
from gemm import *
KVP_REC = 4224

def wave_allsum(a, regs, tmp):
    for ror in (8, 4, 2, 1):
        a('s_nop 1')
        for r in regs: a('v_add_f32_dpp v%d, v%d, v%d row_ror:%d row_mask:0xf bank_mask:0xf' % (r, r, r, ror))
    for sw in ('v_permlane16_swap_b32', 'v_permlane32_swap_b32'):
        for i, r in enumerate(regs): a('v_mov_b32 v%d, v%d' % (tmp + i, r))
        a('s_nop 1')
        for i, r in enumerate(regs): a('%s v%d, v%d' % (sw, r, tmp + i))
        for i, r in enumerate(regs): a('v_add_f32 v%d, v%d, v%d' % (r, r, tmp + i))

def gu_touch(a, rounds, vT, vdst, st0, st1):
    r0 = rounds[0]; n = len([r for r in rounds if r is not None])
    assert list(rounds[:n]) == list(range(r0, r0 + n))
    a('s_bitcmp1_b32 s2, 0')
    a('s_cselect_b32 s%d, s%d, s%d' % (SRD_T, P_WU, P_WG))
    a('s_cselect_b32 s%d, s%d, s%d' % (SRD_T + 1, P_WU + 1, P_WG + 1))
    a('s_cmp_lt_u32 s%d, %d' % (S_WAVE, n))
    a('s_cselect_b32 s%d, %d, 0' % (SRD_T + 2, 1024 * 7168))
    a('s_mov_b32 s%d, 0x20000' % (SRD_T + 3))
    a('s_add_u32 s%d, s%d, %d' % (st0, S_WAVE, r0))
    a('s_lshl_b32 s%d, s%d, 7' % (st0, st0))
    a('s_lshr_b32 s%d, s2, 1' % st1)
    a('s_add_u32 s%d, s%d, s%d' % (st0, st0, st1))
    a('s_lshl_b32 s%d, s%d, 13' % (st0, st0))
    return 'buffer_load_dword v%d, v%d, s[%d:%d], s%d offen' % (vdst, vT, SRD_T, SRD_T + 3, st0)

def kern_k0(a, name, kidx, stamp=False, opt=None):
    opt = opt or {}
    st = Stamps(stamp, kidx)
    kernel_begin(a, name)
    end = a.newlabel('Lend')
    a('s_cmp_ge_u32 s2, 256')
    a('s_cbranch_scc1 %s' % end)
    load_ptrs(a)
    st.take(a)
    wave_id(a, 1)
    a('v_and_b32 v1, 63, v0')
    if opt.get('code'):
        a('v_lshlrev_b32 v78, 7, v1')
        l = a.newlabel('Lhere')
        a(code_touch(a, l, 'Lcode_end', 78, 79, 96, 100))
        a.label(l)
    a('s_mov_b32 s60, 0xffff0000')
    a('v_lshrrev_b32 v2, 1, v1')
    a('v_lshlrev_b32 v2, 6, v2')
    a('v_and_b32 v3, 1, v1')
    a('v_lshl_add_u32 v2, v3, 4, v2')
    a('v_lshlrev_b32 v73, 4, v1')
    a('v_lshrrev_b32 v3, 2, v1')
    a('v_mul_u32_u24 v3, 6144, v3')
    a('v_and_b32 v4, 3, v1')
    a('v_lshl_add_u32 v74, v4, 7, v3')
    a('s_lshr_b32 s28, s2, 3')
    a('s_mul_i32 s28, s28, %d' % (32 * 6144))
    a('s_bfe_u32 s29, s2, 0x20001')
    a('s_lshl_b32 s29, s29, 9')
    a('s_add_u32 s28, s28, s29')
    a('s_lshl_b32 s29, s%d, 11' % S_WAVE)
    a('s_add_u32 s28, s28, s29')
    a('s_add_u32 s29, s28, %d' % (16 * 6144))
    a('s_lshl_b32 s25, s2, 14')
    a('s_lshl_b32 s26, s%d, 12' % S_WAVE)
    a('s_add_u32 s25, s25, s26')
    a('s_lshr_b32 s27, s25, 1')
    a('s_waitcnt lgkmcnt(0)')
    srd_off(a, SRD_A, P_X, 's25', 4096)
    for r in range(2):
        for j in range(2):
            d = 8 + 8 * r + 4 * j
            a('buffer_load_dwordx4 v[%d:%d], v2, s[%d:%d], 0 offen offset:%d' % (d, d + 3, SRD_A, SRD_A + 3, 2048 * r + 32 * j))
    srd_off(a, SRD_W, P_WO, 's27', 2048)
    a('buffer_load_dwordx4 v[64:67], v73, s[%d:%d], 0 offen' % (SRD_W, SRD_W + 3))
    a('buffer_load_dwordx4 v[68:71], v73, s[%d:%d], 0 offen offset:1024' % (SRD_W, SRD_W + 3))
    a('s_mov_b32 s%d, s%d' % (SRD_T, P_WQKV))
    a('s_mov_b32 s%d, s%d' % (SRD_T + 1, P_WQKV + 1))
    a('s_cmp_lt_u32 s%d, %d' % (S_WAVE, 0 if opt.get('notouch') else 3))
    a('s_cselect_b32 s%d, %d, 0' % (SRD_T + 2, 1024 * 6144))
    a('s_mov_b32 s%d, 0x20000' % (SRD_T + 3))
    a('buffer_load_dword v72, v74, s[%d:%d], s28 offen %s' % (SRD_T, SRD_T + 3, opt.get('tflag', '')))
    a('buffer_load_dword v72, v74, s[%d:%d], s29 offen %s' % (SRD_T, SRD_T + 3, opt.get('tflag', '')))
    a('s_lshr_b32 s25, s2, 2')
    a('s_lshl_b32 s25, s25, 16')
    a('s_bfe_u32 s26, s2, 0x10001')
    a('s_lshl_b32 s26, s26, 10')
    a('s_add_u32 s25, s25, s26')
    a('s_and_b32 s26, s2, 1')
    a('s_lshl_b32 s26, s26, 7')
    a('s_add_u32 s25, s25, s26')
    srd_off(a, SRD_B, P_WS, 's25', 31 * 2048 + 3 * 256 + 128)
    srd_off(a, SRD_X0, P_WS, WS_SMALL, SM_BYTES)
    a('s_lshl_b32 s26, s%d, 1' % S_WAVE)
    a('v_and_b32 v3, 7, v1')
    a('v_xor_b32 v3, s26, v3')
    a('v_lshlrev_b32 v3, 4, v3')
    a('v_lshl_add_u32 v4, v1, 8, v3')
    a('v_xor_b32 v5, 16, v4')
    a('v_lshlrev_b32 v6, 4, v0')
    a('v_bfe_u32 v3, v0, 4, 3')
    a('v_xor_b32 v3, v3, v0')
    a('v_and_b32 v3, 7, v3')
    a('v_lshlrev_b32 v3, 4, v3')
    a('v_bfe_u32 v7, v0, 3, 2')
    a('v_lshl_add_u32 v3, v7, 8, v3')
    a('v_lshrrev_b32 v7, 5, v0')
    a('v_lshl_add_u32 v7, v7, 11, v3')
    a('v_lshlrev_b32 v75, 20, v1')
    a('s_lshl_b32 s25, s2, 5')
    a('s_lshl_b32 s26, s%d, 3' % S_WAVE)
    a('s_add_u32 s25, s25, s26')
    a('s_add_u32 s25, s25, %d' % SM_MX)
    a('s_lshr_b32 s26, s2, 3')
    a('s_lshl_b32 s26, s26, 6')
    a('s_and_b32 s27, s2, 3')
    a('s_lshl_b32 s27, s27, 4')
    a('s_add_u32 s26, s26, s27')
    a('s_bfe_u32 s27, s2, 0x10002')
    a('s_lshl_b32 s27, s27, 3')
    a('s_add_u32 s26, s26, s27')
    a('s_lshl_b32 s27, s%d, 1' % S_WAVE)
    a('s_add_u32 s26, s26, s27')
    a('s_add_u32 s30, s26, %d' % SM_WBAR)
    a('s_waitcnt vmcnt(4)')
    for i in range(16):
        a('v_lshlrev_b32 v%d, 16, v%d' % (32 + 2 * i, 8 + i))
        a('v_and_b32 v%d, s60, v%d' % (33 + 2 * i, 8 + i))
    for r in range(2):
        s = 24 + 2 * r; b = 32 + 16 * r
        a('v_pk_add_f32 v[%d:%d], v[%d:%d], v[%d:%d]' % (s, s + 1, b, b + 1, b + 2, b + 3))
        for i in range(2, 8): a('v_pk_add_f32 v[%d:%d], v[%d:%d], v[%d:%d]' % (s, s + 1, s, s + 1, b + 2 * i, b + 2 * i + 1))
        a('v_add_f32 v%d, v%d, v%d' % (s, s, s + 1))
    wave_allsum(a, [24, 26], 28)
    a('v_mul_f32 v76, 0x%x, v24' % f2u(1.0 / 1024))
    a('v_mul_f32 v77, 0x%x, v26' % f2u(1.0 / 1024))
    for r in range(2):
        s = 24 + 2 * r; b = 32 + 16 * r
        a('v_mul_f32 v%d, 0x%x, v%d' % (s, f2u(-1.0 / 1024), s))
        a('v_mov_b32 v%d, v%d' % (s + 1, s))
        for i in range(8): a('v_pk_add_f32 v[%d:%d], v[%d:%d], v[%d:%d]' % (b + 2 * i, b + 2 * i + 1, b + 2 * i, b + 2 * i + 1, s, s + 1))
        a('v_pk_mul_f32 v[%d:%d], v[%d:%d], v[%d:%d]' % (s, s + 1, b, b + 1, b, b + 1))
        for i in range(1, 8): a('v_pk_fma_f32 v[%d:%d], v[%d:%d], v[%d:%d], v[%d:%d]' % (s, s + 1, b + 2 * i, b + 2 * i + 1, b + 2 * i, b + 2 * i + 1, s, s + 1))
        a('v_add_f32 v%d, v%d, v%d' % (s, s, s + 1))
    wave_allsum(a, [24, 26], 28)
    for r in range(2):
        s = 24 + 2 * r
        a('v_mov_b32 v%d, 0x%x' % (s + 1, f2u(1e-5)))
        a('v_fmac_f32 v%d, 0x%x, v%d' % (s + 1, f2u(1.0 / 1024), s))
        a('v_rsq_f32 v%d, v%d' % (s, s + 1))
    a('s_nop 0')
    for r in range(2):
        s = 24 + 2 * r; b = 32 + 16 * r
        a('v_mov_b32 v%d, v%d' % (s + 1, s))
        for i in range(8): a('v_pk_mul_f32 v[%d:%d], v[%d:%d], v[%d:%d]' % (b + 2 * i, b + 2 * i + 1, b + 2 * i, b + 2 * i + 1, s, s + 1))
        for e in range(2):
            for j in range(2):
                for q in range(2):
                    src = b + 8 * j + 4 * e + 2 * q
                    a('v_cvt_pk_bf16_f32 v%d, v%d, v%d' % (8 + 8 * r + 4 * e + 2 * j + q, src, src + 1))
        for e in range(2):
            d = 8 + 8 * r + 4 * e
            a('ds_write_b128 v%d, v[%d:%d] offset:%d' % (4 + r, d, d + 3, 128 * e))
    a('s_waitcnt lgkmcnt(0)')
    a('s_barrier')
    for i in range(4): a('ds_read_b128 v[%d:%d], v6 offset:%d' % (32 + 4 * i, 35 + 4 * i, 4096 * i))
    a('s_waitcnt vmcnt(2)')
    a('v_lshlrev_b32 v24, 16, v64')
    a('v_and_b32 v25, s60, v64')
    for i in range(1, 8):
        a('v_lshlrev_b32 v26, 16, v%d' % (64 + i))
        a('v_and_b32 v27, s60, v%d' % (64 + i))
        a('v_pk_add_f32 v[24:25], v[24:25], v[26:27]')
    a('v_add_f32 v24, v24, v25')
    for i in range(4):
        a('s_mov_b32 s26, %d' % (16384 * i))
        a('s_waitcnt lgkmcnt(%d)' % (3 - i))
        a('buffer_store_dwordx4 v[%d:%d], v7, s[%d:%d], s26 offen %s' % (32 + 4 * i, 35 + 4 * i, SRD_B, SRD_B + 3, opt.get('sflag', '')))
    a('buffer_store_dwordx2 v[76:77], v75, s[%d:%d], s25 offen' % (SRD_X0, SRD_X0 + 3))
    wave_allsum(a, [24], 28)
    a('v_mul_f32 v24, 0x%x, v24' % f2u(1.0 / 1024))
    a('v_cvt_pk_bf16_f32 v24, v24, v24')
    a('buffer_store_short v24, v75, s[%d:%d], s30 offen' % (SRD_X0, SRD_X0 + 3))
    if stamp:
        a('s_waitcnt vmcnt(0)')
        for _ in range(4): st.take(a)
        st.flush(a, P_WS, 's2', 2, 'v0')
    a.label(end)
    a('s_endpgm')
    kernel_desc(a, name, 80, 102, 80)

def kern_b(a, name, kidx, stamp=False, opt=None):
    opt = opt or {}
    st = Stamps(stamp, kidx)
    kernel_begin(a, name)
    end = a.newlabel('Lend')
    a('s_cmp_ge_u32 s2, 256')
    a('s_cbranch_scc1 %s' % end)
    load_ptrs(a)
    st.take(a)
    wave_id(a, 1)
    a('v_and_b32 v1, 63, v0')
    a('v_lshlrev_b32 v2, 4, v0')
    a('v_lshlrev_b32 v3, 4, v1')
    a('s_and_b32 s25, s2, 7')
    a('s_lshl_b32 s25, s25, 2')
    a('s_lshr_b32 s26, s2, 6')
    a('s_add_u32 s25, s25, s26')
    a('s_bfe_u32 s26, s2, 0x30003')
    a('s_mul_i32 s27, s25, %d' % (16 * KVP_REC))
    a('s_add_u32 s27, s27, %d' % WS_KVP)
    a('s_lshl_b32 s28, s26, 3')
    a('s_lshl_b32 s29, s%d, 1' % S_WAVE)
    a('s_add_u32 s28, s28, s29')
    a('s_lshl_b32 s28, s28, 16')
    a('s_lshl_b32 s29, s25, 11')
    a('s_add_u32 s28, s28, s29')
    a('s_add_u32 s29, s28, %d' % WS_PQ)
    a('s_add_u32 s28, s28, %d' % WS_O)
    a('v_lshrrev_b32 v4, 3, v1')
    a('v_mul_u32_u24 v4, %d, v4' % KVP_REC)
    a('v_and_b32 v5, 7, v1')
    a('v_lshl_add_u32 v4, v5, 4, v4')
    a('s_waitcnt lgkmcnt(0)')
    srd_off(a, SRD_A, P_WS, 's27', 16 * KVP_REC)
    srd_off(a, SRD_X0, P_WS, 's29', 65536 + 2048)
    srd_off(a, SRD_B, P_WS, 's28', 65536 + 2048)
    for p in range(16):
        a('s_mov_b32 s30, %d' % (p * KVP_REC))
        a('buffer_load_dwordx4 v[%d:%d], v2, s[%d:%d], s30 offen' % (16 + 4 * p, 19 + 4 * p, SRD_A, SRD_A + 3))
    a('s_mov_b32 s30, 4096')
    a('buffer_load_dwordx4 v[8:11], v4, s[%d:%d], s30 offen' % (SRD_A, SRD_A + 3))
    a('s_mov_b32 s30, %d' % (4096 + 8 * KVP_REC))
    a('buffer_load_dwordx4 v[12:15], v4, s[%d:%d], s30 offen' % (SRD_A, SRD_A + 3))
    a('s_mov_b32 s30, 65536')
    for tb in range(4):
        a('buffer_load_dwordx4 v[%d:%d], v3, s[%d:%d], %s offen offset:%d' % (80 + 4 * tb, 83 + 4 * tb, SRD_X0, SRD_X0 + 3, 's30' if tb >> 1 else '0', 1024 * (tb & 1)))
    a('v_lshrrev_b32 v5, 3, v1')
    a('v_lshlrev_b32 v5, 11, v5')
    a('v_and_b32 v6, 7, v1')
    a('v_lshl_add_u32 v97, v6, 7, v5')
    a('s_lshr_b32 s31, s2, 3')
    a('s_lshl_b32 s31, s31, 2')
    a('s_add_u32 s31, s31, s%d' % S_WAVE)
    a('s_lshl_b32 s31, s31, 14')
    a('s_and_b32 s58, s2, 1')
    a('s_lshl_b32 s58, s58, 10')
    a('s_add_u32 s31, s31, s58')
    srd(a, SRD_W, 's%d' % P_WO, 's%d' % (P_WO + 1), 0 if opt.get('notouch') else 1024 * 2048)
    a('buffer_load_dword v96, v97, s[%d:%d], s31 offen' % (SRD_W, SRD_W + 3))
    nt = 1
    if opt.get('gu'):
        a('v_lshlrev_b32 v98, 7, v1')
        a(gu_touch(a, opt['gu'], 98, 96, 58, 59)); nt = 2
    a('s_and_b32 s31, s%d, 1' % S_WAVE)
    a('s_lshl_b32 s31, s31, 10')
    a('s_lshr_b32 s58, s%d, 1' % S_WAVE)
    a('s_lshl_b32 s58, s58, 3')
    a('s_add_u32 s31, s31, s58')
    a('v_add_u32 v6, s31, v3')
    a('v_and_b32 v7, 3, v1')
    a('v_lshlrev_b32 v7, 4, v7')
    a('v_bfe_u32 v5, v1, 2, 1')
    a('v_lshl_add_u32 v7, v5, 3, v7')
    for p in range(1, 16):
        a('s_waitcnt vmcnt(%d)' % (21 + nt - p))
        a('v_pk_add_f32 v[16:17], v[16:17], v[%d:%d]' % (16 + 4 * p, 17 + 4 * p))
        a('v_pk_add_f32 v[18:19], v[18:19], v[%d:%d]' % (18 + 4 * p, 19 + 4 * p))
    a('v_cvt_pk_bf16_f32 v16, v16, v17')
    a('v_cvt_pk_bf16_f32 v17, v18, v19')
    a('ds_write_b64 v6, v[16:17]')
    a('s_waitcnt vmcnt(%d)' % (4 + nt))
    a('v_pk_add_f32 v[8:9], v[8:9], v[12:13]')
    a('v_pk_add_f32 v[10:11], v[10:11], v[14:15]')
    a('s_nop 1')
    for r in range(8, 12): a('v_add_f32_dpp v%d, v%d, v%d row_ror:8 row_mask:0xf bank_mask:0xf' % (r, r, r))
    for sw in ('v_permlane16_swap_b32', 'v_permlane32_swap_b32'):
        for r in range(4): a('v_mov_b32 v%d, v%d' % (12 + r, 8 + r))
        a('s_nop 1')
        for r in range(4): a('%s v%d, v%d' % (sw, 8 + r, 12 + r))
        for r in range(4): a('v_add_f32 v%d, v%d, v%d' % (8 + r, 8 + r, 12 + r))
    a('v_cvt_pk_bf16_f32 v8, v8, v9')
    a('v_cvt_pk_bf16_f32 v9, v10, v11')
    a('ds_write_b64 v7, v[8:9] offset:2048')
    a('v_and_b32 v5, 0x30, v1')
    a('s_waitcnt lgkmcnt(0)')
    a('s_barrier')
    a('ds_read_b128 v[16:19], v3')
    a('ds_read_b128 v[20:23], v3 offset:1024')
    a('ds_read_b128 v[24:27], v5 offset:2048')
    a('s_waitcnt vmcnt(%d) lgkmcnt(0)' % nt)
    for tb in range(4):
        for j in range(3):
            d = 32 + 12 * tb + 4 * j
            a('v_mfma_f32_16x16x32_bf16 v[%d:%d], v[%d:%d], v[%d:%d], 0' % (d, d + 3, 16 + 4 * j, 19 + 4 * j, 80 + 4 * tb, 83 + 4 * tb))
    a('s_nop 7')
    for tb in range(4): a('v_add_f32 v%d, 0x%x, v%d' % (40 + 12 * tb, f2u(1e-6), 40 + 12 * tb))
    for tb in range(4): a('v_rcp_f32 v%d, v%d' % (40 + 12 * tb, 40 + 12 * tb))
    for tb in range(4):
        d = 32 + 12 * tb
        a('v_mov_b32 v%d, v%d' % (d + 9, d + 8))
        for r in range(0, 8, 2): a('v_pk_mul_f32 v[%d:%d], v[%d:%d], v[%d:%d]' % (d + r, d + r + 1, d + r, d + r + 1, d + 8, d + 9))
        for r in range(4): a('v_cvt_pk_bf16_f32 v%d, v%d, v%d' % (80 + 4 * tb + r, d + 2 * r, d + 2 * r + 1))
        a('buffer_store_dwordx4 v[%d:%d], v3, s[%d:%d], %s offen offset:%d' % (80 + 4 * tb, 83 + 4 * tb, SRD_B, SRD_B + 3, 's30' if tb >> 1 else '0', 1024 * (tb & 1)))
    if stamp:
        a('s_waitcnt vmcnt(0)')
        for _ in range(4): st.take(a)
        st.flush(a, P_WS, 's2', 2, 'v0')
    a.label(end)
    a('s_endpgm')
    kernel_desc(a, name, 100, 102, 100)
```

```python
import sys, json
from kern_d import *
from kern_ace import *
from kern_a2 import *
from kern_d3 import kern_d3, d3_lds
from kern_c3 import kern_c3, c3_lds
def gen(path, opt=None, stamp=False, header=''):
    opt = opt or {}
    a = Asm()
    if header: a.raw(header.rstrip('\n'))
    oa, oc, od, oe = (opt.get(k, {}) for k in 'acde')
    a.raw('; @launch kernel=attn_kernel grid=(256,1,1) block=(256,1,1) lds=%d' % A2_LDS)
    a.raw('; @launch kernel=wo_kernel grid=(256,1,1) block=(256,1,1) lds=%d' % (c3_lds(oc) if oc.get('v3') else ce_lds(oc)))
    a.raw('; @launch kernel=glu_kernel grid=(256,1,1) block=(256,1,1) lds=%d' % (d3_lds(od) if od.get('v3') else d_lds(od)))
    a.raw('; @launch kernel=down_kernel grid=(256,1,1) block=(256,1,1) lds=%d' % ce_lds(oe))
    a.raw('.amdgcn_target "amdgcn-amd-amdhsa--gfx950"')
    kern_a2(a, 'attn_kernel', 0, stamp, oa)
    if oc.get('v3'): kern_c3(a, 'wo_kernel', 1, stamp, oc)
    else: kern_ce(a, 'wo_kernel', 1, 'C', stamp, oc)
    (kern_d3 if od.get('v3') else kern_d)(a, 'glu_kernel', 2, stamp, od)
    kern_ce(a, 'down_kernel', 3, 'E', stamp, oe)
    a.raw('.text')
    a.label('Lcode_end')
    a('s_endpgm')
    open(path, 'w').write(a.text())
BEST = {'a': {'gu': [0, 1, None, None], 'gu2': [2, 3, None, None], 'arr': 2, 'sig': 38, 'poll2': 180, 'chk2': 230},
        'c': {'v3': 1, 'code': 'glu_kernel', 'rot': 0, 'sflag': 'sc1'},
        'd': {'v3': 1, 'code': 'down_kernel', 'sflag': 'sc1', 'touch': [(60, 'gu', 4), (105, 'gu', 5), (150, 'gu', 6), (200, 'wd', 0), (250, 'wd', 1), (300, 'wd', 2), (350, 'wd', 3)]},
        'e': {'slow': 1}}
if __name__ == '__main__':
    HEADER = open('sequential_preLN__linear_attn_block__glu_gated_glu__prompt.s.ref').read().split('; Override')[0]
    gen(sys.argv[1] if len(sys.argv) > 1 else 'v4.s', BEST, False, HEADER)
```

```python
from gemm import *
from kern_small import wave_allsum, gu_touch

WS_ST1 = 40 << 20
WS_CS1 = WS_ST1 + (256 << 10)
WS_KVA = WS_ST1 + (512 << 10)
KVA_REC = 8704
CNT_OFF = 768 << 10
A2_BYTES = 1 << 20
A2_LDS = 163840
R = 16384
EXCH = 8 * R

class Stream:
    def __init__(self, a):
        self.a = a; self.lds = []; self.vm = []
    def __call__(self, s, tag=None):
        for l in s.strip().split('\n'):
            l = l.strip()
            if l.startswith('ds_'): self.lds.append(tag)
            elif is_vmem(l): self.vm.append(tag)
            self.a(l)
    def _n(self, log, tags):
        n = 0
        for t in reversed(log):
            if t in tags: return n
            n += 1
        return None
    def wait(self, lds=(), vm=(), force=False):
        p = []
        n = self._n(self.vm, vm)
        if n is not None:
            n = min(n, 63); p.append('vmcnt(%d)' % n); self.vm = self.vm[len(self.vm) - n:]
        n = self._n(self.lds, lds)
        if n is not None:
            n = min(n, 15); p.append('lgkmcnt(%d)' % n); self.lds = self.lds[len(self.lds) - n:]
        if p: self.a('s_waitcnt ' + ' '.join(p))
    def wait_all(self, lds=False, vm=False):
        p = []
        if vm: p.append('vmcnt(0)'); self.vm = []
        if lds: p.append('lgkmcnt(0)'); self.lds = []
        self.a('s_waitcnt ' + ' '.join(p))

TRANS = ('v_exp', 'v_rcp', 'v_rsq', 'v_log', 'v_sqrt')
class Fill:
    def __init__(self, e):
        self.e = e; self.q = []
    def add(self, items, nb=0):
        for x in items:
            if not isinstance(x, tuple): x = (x, None)
            self.q.append((x[0], x[1], nb))
    @staticmethod
    def kind(x):
        if callable(x) or x.startswith('s_'): return 's', 1
        if x.startswith('ds_'): return 'l', (2 if 'b128' in x else 1)
        if is_vmem(x): return 'm', 2
        return 'v', (2 if x.startswith(TRANS) or x.startswith('v_pk') else 1)
    def _emit(self):
        x, t, _ = self.q.pop(0)
        if callable(x): x()
        else: self.e(x, t)
    def pre(self, idx):
        if self.q and self.q[0][2] <= idx and self.kind(self.q[0][0])[0] == 's': self._emit()
    def post(self, idx, used, cap=2):
        valu = False; vec = used > 0
        while self.q and self.q[0][2] <= idx:
            k, c = self.kind(self.q[0][0])
            if used + c > cap: break
            if k in 'lm' and valu: break
            if k == 's' and vec: break
            valu |= k == 'v'; vec |= k != 's'
            used += c
            self._emit()
    def flush(self):
        while self.q: self._emit()

def weave(e, main, side, every):
    side = list(side)
    for i, x in enumerate(main):
        e(x)
        if side and i % every == every - 1:
            for y, t in side.pop(0): e(y, t)
    for it in side:
        for y, t in it: e(y, t)

def pk(op, d, x, y, z=None, mod=''):
    f = lambda r: r if isinstance(r, str) else 'v[%d:%d]' % (r, r + 1)
    return 'v_pk_%s_f32 %s, %s, %s%s %s' % (op, f(d), f(x), f(y), '' if z is None else ', ' + f(z), mod)

def bc(reg, pos, nsrc):
    lo = [0] * nsrc; hi = [1] * nsrc
    lo[pos] = hi[pos] = reg & 1
    return reg & ~1, 'op_sel:[%s] op_sel_hi:[%s]' % (','.join(map(str, lo)), ','.join(map(str, hi)))

def allsum4(regs, tmp):
    o = []
    for sw in ('v_permlane16_swap_b32', 'v_permlane32_swap_b32'):
        o += ['v_mov_b32 v%d, v%d' % (tmp + i, r) for i, r in enumerate(regs)]
        o.append('s_nop 1')
        o += ['%s v%d, v%d' % (sw, r, tmp + i) for i, r in enumerate(regs)]
        o += ['v_add_f32 v%d, v%d, v%d' % (r, r, tmp + i) for i, r in enumerate(regs)]
    return o

def unpk(lst):
    import re
    o = []
    for x in lst:
        if isinstance(x, str) and x.startswith('v_pk_'):
            op = x.split()[0][5:8]
            regs = re.findall(r'([vs])\[(\d+):\d+\]', x)
            n = len(regs) - 1
            lo = re.search(r'op_sel:\[([\d,]+)\]', x); hi = re.search(r'op_sel_hi:\[([\d,]+)\]', x)
            lo = list(map(int, lo.group(1).split(','))) if lo else [0] * n
            hi = list(map(int, hi.group(1).split(','))) if hi else [1] * n
            for h, sel in enumerate((lo, hi)):
                src = ['%s%d' % (f, int(r) + sel[i]) for i, (f, r) in enumerate(regs[1:])]
                if op != 'fma' and src[1][0] == 's': src = src[::-1]
                o.append('v_%s_f32 v%d, %s' % (op, int(regs[0][1]) + h, ', '.join(src)))
        else: o.append(x)
    return o

def phi8(regs, tmp, rl, rs, sOne, sE):
    n = len(regs); o = []
    for i, r in enumerate(regs):
        x, md = rl(i, 2); o.append(pk('mul', tmp + 2 * i, r, x, None, md))
    o += ['v_exp_f32 v%d, v%d clamp' % (tmp + i, tmp + i) for i in range(2 * n)]
    for i, r in enumerate(regs):
        x, md = rs(i, 3); o.append(pk('fma', r, r, x, 's[%d:%d]' % (sOne, sOne + 1), md))
    for i, r in enumerate(regs): o += ['v_max_f32 v%d, v%d, v%d' % (r + h, r + h, tmp + 2 * i + h) for h in range(2)]
    o += [pk('add', r, r, 's[%d:%d]' % (sE, sE + 1)) for r in regs]
    return o

def phi_tail(regs, tmp, sE):
    n = len(regs); o = []
    o += ['v_min_f32 v%d, 0, v%d' % (tmp + i, tmp + i) for i in range(2 * n)]
    o += ['v_exp_f32 v%d, v%d' % (tmp + i, tmp + i) for i in range(2 * n)]
    for r in regs: o += ['v_max_f32 v%d, 0, v%d' % (r, r), 'v_max_f32 v%d, 0, v%d' % (r + 1, r + 1)]
    o += [pk('add', r, r, tmp + 2 * i) for i, r in enumerate(regs)]
    o += [pk('add', r, r, 's[%d:%d]' % (sE, sE + 1)) for r in regs]
    return o

def spin(a, e, load, vreg, want, scnt, sleep=0):
    ok = a.newlabel('Lok'); lp = a.newlabel('Lspin')
    a('v_cmp_ne_u32 vcc, %s, v%d' % (want, vreg))
    a('s_mov_b32 s%d, 0x80000' % scnt)
    a('s_cmp_eq_u64 vcc, 0')
    a('s_cbranch_scc1 %s' % ok)
    a.label(lp)
    if sleep: a('s_sleep %d' % sleep)
    a(load)
    a('s_waitcnt vmcnt(0)')
    a('v_cmp_ne_u32 vcc, %s, v%d' % (want, vreg))
    a('s_sub_u32 s%d, s%d, 1' % (scnt, scnt))
    a('s_cbranch_scc1 %s' % ok)
    a('s_cmp_lg_u64 vcc, 0')
    a('s_cbranch_scc1 %s' % lp)
    a.label(ok)

def kern_a2(a, name, kidx, stamp=False, opt=None, mega=None):
    opt = opt or {}
    st = mega.st if mega else Stamps(stamp, kidx)
    e = mega.e if mega else Stream(a)
    marks = opt.get('marks', ['land0', 'p1end', 'p2start', 'p2end'])
    def mark(x):
        if mega: mega.mark(x)
        elif x in marks: st.take(a)
    hf = 'sc1' if mega else ''
    kernel_begin(a, name)
    end = mega.end if mega else a.newlabel('Lend')
    a('s_cmp_ge_u32 s2, 256')
    a('s_cbranch_scc1 %s' % end)
    load_ptrs(a)
    st.take(a)
    S_RB, S_HP, S_T0, S_T1, S_WV, S_PN, S_SL = 25, 26, 27, 28, 29, 30, 31
    SRD_KV, SRD_X, SRD_Q, SRD_S, SRD_O, SRD_D = 32, 36, 40, 44, 48, 56
    S_QOFF, S_QSL, S_KVA = 54, 55, 3
    S_E, S_M = 60, 62
    WR = 64
    vTID, vL, vX16, vW, vXs, vRd, vXR = 96, 97, 98, 100, 102, 106, 114
    vT, vJ, vP, vPA = 116, 117, 118, 119
    MEA, RSA, RLA = 120, 128, 136
    MEB, RSB, RLB = 144, 146, 148
    CSK, CSQ = 152, 160
    G1, G2 = 176, 192
    T = 208
    acc = lambda tb, cb: 4 * (cb * 2 + tb)
    accq = lambda tb, cb: 4 * (tb * 4 + cb)
    xa = lambda t, ks, tb: ar(16 * t + 8 * ks + 4 * tb, 4)
    a('v_mov_b32 v%d, v0' % vTID)
    wave_id(a, 1)
    a('v_and_b32 v%d, 63, v0' % vL)
    a('v_lshlrev_b32 v%d, 7, v%d' % (vT, vL))
    if opt.get('code', 1):
        l = a.newlabel('Lhere')
        e(code_touch(a, l, opt.get('code_end', 'Lcode_end'), vT, vJ, 96, 100))
        a.label(l)
    a('v_lshlrev_b32 v%d, 4, v%d' % (vX16, vL))
    a('''s_and_b32 s%d, s2, 1
    s_bfe_u32 s%d, s2, 0x30003
    s_lshl_b32 s%d, s%d, 1
    s_add_u32 s%d, s%d, s%d
    s_lshl_b32 s%d, s%d, 3
    s_add_u32 s%d, s%d, s%d''' % (S_RB, S_T0, S_SL, S_T0, S_SL, S_SL, S_RB, S_RB, S_RB, S_RB, S_RB, S_T0))
    a('''s_bfe_u32 s%d, s2, 0x20001
    s_lshr_b32 s%d, s2, 6
    s_add_u32 s%d, s%d, s%d
    s_lshl_b32 s%d, s%d, 2
    s_add_u32 s%d, s%d, s%d
    s_and_b32 s%d, s%d, 15
    s_lshl_b32 s%d, s%d, 2
    s_add_u32 s%d, s%d, s%d''' % (S_HP, S_T0, S_SL, S_SL, S_HP, S_T1, S_T0, S_SL, S_SL, S_T1, S_SL, S_SL, S_HP, S_HP, S_HP, S_HP, S_T0))
    a('s_lshl_b32 s%d, s%d, 2' % (S_PN, S_RB))
    a('s_add_u32 s%d, s%d, s%d' % (S_PN, S_PN, S_WAVE))
    a('s_lshl_b32 s%d, s%d, 12' % (S_WV, S_WAVE))
    a('s_mov_b32 s%d, s%d' % (S_QSL, S_SL))
    a('s_mul_i32 s%d, s%d, %d' % (S_WOFF, S_SL, 64 * 6144))
    a('s_lshl_b32 s%d, s%d, 7' % (S_XOFF, S_SL))
    a('''v_lshrrev_b32 v2, 3, v%d
    v_mul_u32_u24 v3, 6144, v2
    v_and_b32 v4, 2, v2
    v_and_b32 v5, 7, v%d
    v_xor_b32 v4, v4, v5
    v_lshl_add_u32 v3, v4, 4, v3''' % (vL, vL))
    a('s_mul_i32 s%d, s%d, %d' % (S_T0, S_WAVE, 16 * 6144))
    a('v_add_u32 v%d, s%d, v3' % (vW, S_T0))
    a('v_xor_b32 v3, 64, v%d' % vW)
    a('v_add_u32 v%d, %d, v3' % (vW + 1, 8 * 6144 - 1024))
    a('''v_lshlrev_b32 v3, 11, v2
    v_lshrrev_b32 v4, 4, v%d
    v_xor_b32 v4, v4, v5
    v_lshl_add_u32 v%d, v4, 4, v3''' % (vL, vXs))
    a('v_xor_b32 v3, 64, v%d' % vXs)
    a('v_add_u32 v%d, %d, v3' % (vXs + 1, 8 * 2048 - 1024))
    a('v_add_u32 v%d, %d, v%d' % (vXs + 2, 2 * (8 * 2048 - 1024), vXs))
    a('v_add_u32 v%d, %d, v3' % (vXs + 3, 3 * (8 * 2048 - 1024)))
    a('s_lshl_b32 s%d, s%d, 7' % (S_T1, S_HP))
    a('s_lshl_b32 s%d, s%d, 16' % (S_T0, S_PN))
    a('s_waitcnt lgkmcnt(0)')
    a('s_add_u32 s%d, s%d, s%d' % (SRD_Q, P_WQKV, S_T1))
    a('s_addc_u32 s%d, s%d, 0' % (SRD_Q + 1, P_WQKV + 1))
    a('s_sub_u32 s%d, %d, s%d' % (SRD_Q + 2, 1024 * 6144, S_T1))
    a('s_mov_b32 s%d, 0x20000' % (SRD_Q + 3))
    a('s_add_u32 s%d, s%d, 2048' % (SRD_KV, SRD_Q))
    a('s_addc_u32 s%d, s%d, 0' % (SRD_KV + 1, SRD_Q + 1))
    a('s_sub_u32 s%d, s%d, 2048' % (SRD_KV + 2, SRD_Q + 2))
    a('s_mov_b32 s%d, 0x20000' % (SRD_KV + 3))
    srd_off(a, SRD_X, P_X, 's%d' % S_T0, 65536)

    wslot = lambda s: (s % 5) * R
    xslot = lambda s: (5 + s % 3) * R
    def w_ops(s):
        return [([('s_add_u32 m0, s%d, %d' % (S_WV, wslot(s)), None)] if i == 0 else [],
                 ('buffer_load_dwordx4 v%d, s[%d:%d], s%d offen offset:%d lds' % (vW + (i & 1), SRD_KV, SRD_KV + 3, S_WOFF, 1024 * i), ('s', s))) for i in range(4)]
    def x_ops(s):
        return [([('s_add_u32 m0, s%d, %d' % (S_WV, xslot(s)), None)] if i == 0 else [],
                 ('buffer_load_dwordx4 v%d, s[%d:%d], s%d offen offset:%d lds' % (vXs + i, SRD_X, SRD_X + 3, S_XOFF, 1024 * i), ('s', s))) for i in range(4)]
    adv = ['s_add_u32 s%d, s%d, 1' % (S_SL, S_SL), 's_and_b32 s%d, s%d, 15' % (S_SL, S_SL),
           's_mul_i32 s%d, s%d, %d' % (S_WOFF, S_SL, 64 * 6144), 's_lshl_b32 s%d, s%d, 7' % (S_XOFF, S_SL)]
    qreg = [wslot(11), wslot(12), xslot(13), xslot(14), xslot(15), wslot(13), wslot(14), wslot(15)]
    def q_ops(t, base=None):
        b = qreg[t >> 1] + (t & 1) * 2048 if base is None else base
        pre = [('s_mul_i32 s%d, s%d, %d' % (S_QOFF, S_QSL, 64 * 6144), None), ('s_add_u32 m0, s%d, %d' % (S_WV, b), None)]
        mid = [] if base is not None else [('s_add_u32 s%d, s%d, 1' % (S_QSL, S_QSL), None), ('s_and_b32 s%d, s%d, 15' % (S_QSL, S_QSL), None)]
        return [(pre if j == 0 else mid, ('buffer_load_dwordx4 v%d, s[%d:%d], s%d offen offset:%d lds' % (vW + j, SRD_Q, SRD_Q + 3, S_QOFF, 1024 * j), ('q', t))) for j in range(2)]
    def flat(ops):
        return [p + ([('s_nop 0', None)] if p and 'm0' in p[-1][0] else []) + [o] for p, o in ops]
    def burst(ops, tag=None):
        for it in flat(ops):
            for y, t in it: e(y, tag if tag and t else t)
    advi = [[(x, None) for x in adv]]
    if opt.get('help'):
        a('s_and_b32 s%d, s%d, 3' % (S_T0, S_HP))
        a('s_sub_u32 s%d, 3, s%d' % (S_T1, S_T0))
        a('s_lshl_b32 s68, s%d, 2' % S_T1)
        a('s_add_u32 s68, s68, s%d' % S_SL)
        a('s_min_u32 s69, s%d, 1' % S_T0)
        a('s_add_u32 s68, s68, s69')
        a('s_and_b32 s68, s68, 15')
        a('s_mul_i32 s68, s68, %d' % (64 * 6144))
        a('s_lshl_b32 s%d, s%d, 7' % (S_T1, S_T1))
        a('s_add_u32 s68, s68, s%d' % S_T1)
        a('s_lshl_b32 s%d, s%d, 11' % (S_T0, S_T0))
        a('s_add_u32 s68, s68, s%d' % S_T0)
        a('s_and_b32 s69, s%d, 7' % S_HP)
        a('s_lshl_b32 s%d, s%d, 3' % (S_T0, S_WAVE))
        a('s_add_u32 s69, s69, s%d' % S_T0)
        a('s_cmp_lt_u32 s69, 3')
        a('s_cselect_b32 s68, s68, 0x4000000')
        a('v_min_u32 v2, %d, v%d' % (opt['help'] - 1, vL))
        a('v_mul_u32_u24 v2, 6144, v2')
        e('buffer_load_dword v%d, v2, s[%d:%d], s68 offen' % (vJ, SRD_Q, SRD_Q + 3))
    burst(x_ops(0), 'x0'); burst(w_ops(0)); burst(q_ops(0, EXCH))
    for x in adv: a(x)
    srd_off(a, SRD_S, P_WS, WS_ST1, A2_BYTES)
    srd(a, SRD_D, 's%d' % P_DBG, 's%d' % (P_DBG + 1), 256)
    srd_off(a, SRD_O, P_WS, WS_SMALL, SM_BYTES)
    a('s_mul_i32 s%d, s%d, %d' % (S_KVA, S_HP, KVA_REC))
    a('s_add_u32 s%d, s%d, %d' % (S_KVA, S_KVA, WS_KVA - WS_ST1))
    a('s_mov_b32 s%d, 0x%x' % (S_E, f2u(1e-6))); a('s_mov_b32 s%d, s%d' % (S_E + 1, S_E))
    a('s_mov_b32 s%d, 0xffff0000' % S_M)
    S_1 = 0
    a('s_mov_b32 s0, 1.0'); a('s_mov_b32 s1, 1.0')
    a('''v_lshrrev_b32 v2, 5, v%d
    v_lshlrev_b32 v2, 12, v2
    v_bfe_u32 v3, v%d, 4, 1
    v_lshl_add_u32 v2, v3, 10, v2
    v_bfe_u32 v4, v%d, 2, 2
    v_lshl_add_u32 v2, v4, 7, v2
    v_bfe_u32 v4, v%d, 3, 2
    v_lshl_add_u32 v2, v4, 5, v2
    v_and_b32 v4, 3, v%d
    v_lshl_add_u32 v%d, v4, 3, v2''' % (vL, vL, vL, vL, vL, vRd))
    for u in range(1, 4): a('v_xor_b32 v%d, %d, v%d' % (vRd + u, 32 * u, vRd))
    for u in range(4): a('v_add_u32 v%d, 0x10000, v%d' % (vRd + 4 + u, vRd + u))
    a('''v_and_b32 v2, 15, v%d
    v_lshrrev_b32 v3, 1, v2
    v_lshrrev_b32 v4, 4, v%d
    v_xor_b32 v3, v3, v4
    v_lshlrev_b32 v3, 4, v3
    v_lshl_add_u32 v2, v2, 7, v3''' % (vL, vL))
    a('s_add_u32 s%d, s%d, %d' % (S_T0, S_WV, 5 * R))
    a('v_add_u32 v%d, s%d, v2' % (vXR, S_T0))
    a('v_xor_b32 v%d, 64, v%d' % (vXR + 1, vXR))
    def wread(reg_base, ks, seg, u, dst):
        o = reg_base + ks * 8192 + seg * 2048
        return ['ds_read_b64_tr_b16 v[%d:%d], v%d offset:%d' % (dst + 2 * h, dst + 2 * h + 1, vRd + u + 4 * (o >> 16), (o & 0xffff) + 512 * h) for h in range(2)]
    def xread(s, ks, tb, dst=None):
        return 'ds_read_b128 %s, v%d offset:%d' % (dst or xa(s, ks, tb), vXR + ks, (s % 3) * R + tb * 2048)
    ONE = T + 44
    vG1, vG2, vONE, vPV = T + 40, T + 41, T + 42, T + 43
    vCW, vSW, vSA, vSB, vCA, vCB, vEW, vEK, vEV, vL4, vZA, vG16 = range(T + 24, T + 36)
    vCSA, vCS0, vCS1, vST = T + 36, T + 37, T + 38, T + 39
    vMX = 99
    CST = EXCH + 4096
    for r in range(4): a('v_mov_b32 v%d, 0x3f803f80' % (ONE + r))
    a('v_mov_b32 v%d, 1' % vONE)
    a('s_lshl_b32 s%d, s%d, 5' % (S_T0, S_WAVE))
    a('v_xor_b32 v%d, s%d, v%d' % (vCS0, S_T0, vRd))
    a('v_add_u32 v%d, %d, v%d' % (vCS1, EXCH, vCS0))
    a('v_lshlrev_b32 v%d, 2, v%d' % (vL4, vL))
    a('v_and_b32 v%d, 0x30, v%d' % (vG16, vL))
    a('v_lshrrev_b32 v2, 4, v%d' % vL)
    a('v_and_b32 v3, 15, v%d' % vL)
    a('v_lshlrev_b32 v3, 2, v3')
    a('v_cmp_eq_u32 s[68:69], 1, v2')
    a('v_cmp_eq_u32 s[100:101], 2, v2')
    a('v_lshl_add_u32 v4, v2, 8, v3')
    a('v_add_u32 v5, 1, v2')
    a('v_lshrrev_b32 v5, 2, v5')
    a('v_lshl_add_u32 v%d, v5, 22, v4' % vCSA)
    a('v_add_u32 v%d, %d, v3' % (vCB, CST))
    a('v_add_u32 v%d, %d, v%d' % (vCA, CST, vG16))
    a('s_lshl_b32 s%d, s%d, 13' % (S_T0, S_WAVE))
    a('s_add_u32 s%d, s%d, %d' % (S_T0, S_T0, EXCH))
    a('v_lshl_add_u32 v%d, v3, 1, s%d' % (vSW, S_T0))
    a('v_add_u32 v%d, s%d, v%d' % (vSA, S_T0, vG16))
    a('v_add_u32 v%d, s%d, v3' % (vSB, S_T0))
    a('v_add_u32 v%d, s%d, v%d' % (vEW, S_T0, vX16))
    a('v_bfe_u32 v4, v%d, 2, 2' % vL)
    a('v_and_b32 v5, 3, v%d' % vL)
    a('v_lshlrev_b32 v6, 8, v4')
    a('v_lshl_add_u32 v6, v5, 4, v6')
    a('v_mul_u32_u24 v7, %d, v2' % (4 * 768))
    a('v_add_u32 v%d, v6, v7' % vG2)
    a('s_lshl_b32 s%d, s%d, 6' % (S_T0, S_WAVE))
    a('s_add_u32 s%d, s%d, %d' % (S_T0, S_T0, CST))
    a('v_add_u32 v%d, s%d, v6' % (vCW, S_T0))
    a('v_lshl_add_u32 v6, v5, 2, v%d' % vG16)
    a('v_lshl_add_u32 v%d, v4, 22, v6' % vZA)
    a('s_lshl_b32 s%d, s%d, 10' % (S_T0, S_WAVE))
    a('s_add_u32 s%d, s%d, %d' % (S_T0, S_T0, EXCH))
    a('v_add_u32 v%d, s%d, v%d' % (vEK, S_T0, vX16))
    a('s_lshr_b32 s%d, s%d, 1' % (S_T0, S_WAVE))
    a('s_lshl_b32 s%d, s%d, 11' % (S_T0, S_T0))
    a('s_add_u32 s%d, s%d, %d' % (S_T0, S_T0, EXCH + 4096))
    a('v_add_u32 v%d, s%d, v%d' % (vEV, S_T0, vX16))
    a('v_lshrrev_b32 v3, 5, v%d' % vL)
    a('v_lshlrev_b32 v4, 22, v3')
    a('v_lshl_add_u32 v%d, v%d, 3, v4' % (vST, vL))
    a('v_and_b32 v2, 15, v%d' % vL)
    a('v_lshlrev_b32 v3, 8, v%d' % vG16)
    a('v_lshl_add_u32 v%d, v2, 4, v3' % vG1)
    a('v_lshlrev_b32 v4, 18, v%d' % vG16)
    a('v_lshl_add_u32 v%d, v2, 3, v4' % vMX)
    a('v_lshlrev_b32 v%d, 22, v%d' % (vPA, vTID))
    a('v_and_b32 v2, 1, v%d' % vL)
    a('v_lshlrev_b32 v%d, 7, v2' % vP)
    S_G1, S_G2, S_AR, S_ST, S_CS = 94, 95, 63, 96, 97
    a('s_lshl_b32 s%d, s%d, 14' % (S_G1, S_RB))
    a('s_lshl_b32 s%d, s%d, 8' % (S_T1, S_WAVE))
    a('s_add_u32 s%d, s%d, s%d' % (S_G1, S_G1, S_T1))
    a('s_lshl_b32 s%d, s%d, 10' % (S_T0, S_HP))
    a('s_add_u32 s%d, s%d, s%d' % (S_ST, S_G1, S_T0))
    a('s_mul_i32 s%d, s%d, %d' % (S_G2, S_HP, 16 * 768))
    a('s_lshl_b32 s%d, s%d, 6' % (S_T1, S_WAVE))
    a('s_add_u32 s%d, s%d, s%d' % (S_G2, S_G2, S_T1))
    a('s_add_u32 s%d, s%d, %d' % (S_G2, S_G2, WS_CS1 - WS_ST1))
    a('s_mul_i32 s%d, s%d, 768' % (S_T0, S_RB))
    a('s_add_u32 s%d, s%d, s%d' % (S_CS, S_G2, S_T0))
    a('s_and_b32 s%d, s2, 1' % S_AR)
    a('s_lshl_b32 s%d, s%d, 7' % (S_AR, S_AR))
    NARR = opt.get('narr', 4)
    if NARR > 1:
        a('s_bfe_u32 s%d, s2, 0x%x' % (S_T0, (NARR.bit_length() - 1) << 16 | 3))
        a('s_lshl_b32 s%d, s%d, 8' % (S_T0, S_T0))
        a('s_add_u32 s%d, s%d, s%d' % (S_AR, S_AR, S_T0))
    a('s_lshl_b32 s%d, s2, 2' % S_T0)
    a('s_add_u32 s%d, s%d, s%d' % (S_T0, S_T0, S_WAVE))
    a('s_lshl_b32 s%d, s%d, 11' % (S_T0, S_T0))
    srd_off(a, SRD_T, P_WO, 's%d' % S_T0, 2048)
    S_WB = 98
    a('''s_lshr_b32 s%d, s2, 3
    s_lshl_b32 s%d, s%d, 6
    s_and_b32 s%d, s2, 3
    s_lshl_b32 s%d, s%d, 4
    s_add_u32 s%d, s%d, s%d
    s_bfe_u32 s%d, s2, 0x10002
    s_lshl_b32 s%d, s%d, 3
    s_add_u32 s%d, s%d, s%d
    s_lshl_b32 s%d, s%d, 1
    s_add_u32 s%d, s%d, s%d
    s_add_u32 s%d, s%d, %d''' % (S_T0, S_T0, S_T0, S_T1, S_T1, S_T1, S_T0, S_T0, S_T1, S_T1, S_T1, S_T1, S_T0, S_T0, S_T1,
                                 S_T1, S_WAVE, S_T0, S_T0, S_T1, S_WB, S_T0, SM_WBAR))
    vWB = 151
    a('v_lshlrev_b32 v%d, 20, v%d' % (vWB, vL))
    for r in range(4): a('v_mov_b32 v%d, 0' % (T + r))
    a('v_cmp_gt_u32 vcc, 34, v%d' % vTID)
    a('s_mul_i32 s%d, s%d, 544' % (S_T0, S_RB))
    a('s_add_u32 s%d, s%d, s%d' % (S_T0, S_T0, S_KVA))
    a('v_mov_b32 v2, 0x400000')
    a('v_cndmask_b32 v2, v2, v%d, vcc' % vX16)
    e('buffer_store_dwordx4 v[%d:%d], v2, s[%d:%d], s%d offen sc1' % (T, T + 3, SRD_S, SRD_S + 3, S_T0), 'pub')
    if mega:
        a('v_cmp_gt_u32 vcc, 3, v%d' % vTID)
        a('s_mul_i32 s%d, s2, 384' % S_T0)
        a('s_add_u32 s%d, s%d, %d' % (S_T0, S_T0, CNT_OFF))
        a('v_mov_b32 v3, 0x400000')
        a('v_cndmask_b32 v3, v3, v%d, vcc' % vT)
        e('buffer_store_dword v%d, v3, s[%d:%d], s%d offen sc1' % (T, SRD_S, SRD_S + 3, S_T0), 'pub')
    a.raw(';@warm a')
    e.wait(vm=['x0'])
    mark('landx')
    for tb in range(2):
        for ks in range(2): e(xread(0, ks, tb, vr(T + 4 + 8 * tb + 4 * ks, 4)), 'x0')
    for ks in range(2):
        for tb in range(2): e(xread(0, ks, tb), ('x', 0, ks))
    e.wait(lds=['x0'])
    m = []
    for i in range(16):
        m += ['v_lshlrev_b32 v%d, 16, v%d' % (2 * i, T + 4 + i), 'v_and_b32 v%d, s%d, v%d' % (2 * i + 1, S_M, T + 4 + i)]
    S0, S1 = 32, 36
    for tb in range(2):
        s = S0 + 2 * tb
        m.append(pk('add', s, 16 * tb, 16 * tb + 2))
        m += [pk('add', s, s, 16 * tb + 2 * i) for i in range(2, 8)]
        m.append('v_add_f32 v%d, v%d, v%d' % (s, s, s + 1))
    m += allsum4([S0, S0 + 2], 40)
    for tb in range(2):
        m.append('v_mul_f32 v%d, 0x%x, v%d' % (S0 + 2 * tb + 1, f2u(-1.0 / 64), S0 + 2 * tb))
        r, md = bc(S0 + 2 * tb + 1, 1, 2)
        m += [pk('add', 16 * tb + 2 * i, 16 * tb + 2 * i, r, None, md) for i in range(8)]
        s = S1 + 2 * tb
        m.append(pk('mul', s, 16 * tb, 16 * tb))
        m += [pk('fma', s, 16 * tb + 2 * i, 16 * tb + 2 * i, s) for i in range(1, 8)]
        m.append('v_add_f32 v%d, v%d, v%d' % (s, s, s + 1))
    m += ['s_nop 1', 'v_permlane16_swap_b32 v%d, v%d' % (S1, S1 + 2), 'v_permlane16_swap_b32 v%d, v%d' % (S0, S0 + 2),
          'v_add_f32 v%d, v%d, v%d' % (S1, S1, S1 + 2), 'v_mov_b32 v%d, v%d' % (S1 + 1, S1), 's_nop 1',
          'v_permlane32_swap_b32 v%d, v%d' % (S1, S1 + 1), 'v_mov_b32 v%d, v%d' % (T + 20, S0),
          'v_add_f32 v%d, v%d, v%d' % (T + 21, S1, S1 + 1)]
    weave(e, m, flat(x_ops(1) + w_ops(1)) + advi, opt.get('wv0', 12))
    e('buffer_store_dwordx2 v[%d:%d], v%d, s[%d:%d], s%d offen sc1' % (T + 20, T + 21, vST, SRD_S, SRD_S + 3, S_ST), 'pub')
    burst(w_ops(2) + x_ops(2))
    for x in adv: a(x)
    e.wait(vm=[('q', 0)])
    a('s_barrier')
    mark('land0')
    CW, CSD = G1, T + 4
    for ks in range(2):
        for seg in range(3):
            d = CW + 4 * (ks * 3 + seg)
            for h in range(2):
                e('ds_read_b64_tr_b16 v[%d:%d], v%d offset:%d' % (d + 2 * h, d + 2 * h + 1, vCS0 if seg else vCS1,
                                                                ks * 8192 + (seg - 1 if seg else 0) * 2048 + 512 * h), ('c', ks))
    D = 6
    def p1_reads(gf):
        s, f = divmod(gf, 16); ks, cb = divmod(f, 8)
        return wread(wslot(s), ks, cb >> 2, cb & 3, WR + 4 * (gf % 8))
    for ks in range(2):
        e.wait(lds=[('c', ks)])
        for seg in range(3):
            d = CSD + 4 * seg
            a('v_mfma_f32_16x16x32_bf16 v[%d:%d], %s, %s, %s' % (d, d + 3, vr(ONE, 4), vr(CW + 4 * (ks * 3 + seg), 4), vr(d, 4) if ks else '0'))
            for r in p1_reads(3 * ks + seg): e(r, ('w', 3 * ks + seg))
    fl = Fill(e)
    fl.add(['v_cndmask_b32 v%d, v%d, v%d, s[68:69]' % (CSD, CSD, CSD + 4),
            'v_cndmask_b32 v%d, v%d, v%d, s[100:101]' % (CSD, CSD, CSD + 8),
            ('buffer_store_dword v%d, v%d, s[%d:%d], s%d offen sc1' % (CSD, vCSA, SRD_S, SRD_S + 3, S_CS), 'pub')], 6)
    poll1 = 'buffer_load_dword v%d, v%d, s[%d:%d], 0 offen sc1' % (vPV, vP, SRD_D, SRD_D + 3)
    ARR, POLL, CHK = opt.get('arr', 1), opt.get('poll', 10), opt.get('chk', 12)
    fl.add([(poll1, 'poll')], 32 * POLL)
    fv = Fill(e)
    g0 = 32 * 13
    for i in range(4):
        fv.add([('buffer_load_dwordx4 v[%d:%d], v%d, s[%d:%d], s%d offen offset:%d sc1' % (G2 + 4 * i, G2 + 4 * i + 3, vG2, SRD_S, SRD_S + 3, S_G2, i * 768), 'g2')], g0)
    for i in range(4):
        fv.add([('buffer_load_dwordx4 v[%d:%d], v%d, s[%d:%d], s%d offen offset:%d sc1' % (G1 + 4 * i, G1 + 4 * i + 3, vG1, SRD_S, SRD_S + 3, S_G1, i * 1024), 'g1')])
    NQ1 = opt.get('nq1', 8)
    m = [lambda: e.wait(vm=['g2'])]
    m += [pk('add', G2 + 2 * h, G2 + 2 * h, G2 + 4 + 2 * h) for h in range(2)]
    m += [pk('add', G2 + 8 + 2 * h, G2 + 8 + 2 * h, G2 + 12 + 2 * h) for h in range(2)]
    m += [pk('add', G2 + 2 * h, G2 + 2 * h, G2 + 8 + 2 * h) for h in range(2)]
    m += allsum4([G2, G2 + 1, G2 + 2, G2 + 3], G2 + 4)
    m += [('ds_write_b128 v%d, v[%d:%d]' % (vCW, G2, G2 + 3), 'tw'), lambda: e.wait(vm=['g1'])]
    NM, RS, M2, DV = T, T + 2, T + 4, T + 6
    for h in range(2):
        m += ['v_add_f32 v%d, v%d, v%d' % (NM + h, G1 + 2 * h, G1 + 4 + 2 * h), 'v_add_f32 v%d, v%d, v%d' % (DV + h, G1 + 8 + 2 * h, G1 + 12 + 2 * h),
              'v_add_f32 v%d, v%d, v%d' % (NM + h, NM + h, DV + h)]
    m += allsum4([NM, NM + 1], DV)
    m += ['s_mov_b32 s%d, 0x%x' % (S_T0, f2u(1.0 / 64))]
    for h in range(2):
        m += ['v_mul_f32 v%d, 0x%x, v%d' % (NM + h, f2u(-1.0 / 1024), NM + h),
              'v_add_f32 v%d, v%d, v%d' % (M2 + h, G1 + 2 * h + 1, G1 + 4 + 2 * h + 1), 'v_add_f32 v%d, v%d, v%d' % (DV + h, G1 + 8 + 2 * h + 1, G1 + 12 + 2 * h + 1),
              'v_add_f32 v%d, v%d, v%d' % (M2 + h, M2 + h, DV + h), 'v_mul_f32 v%d, s%d, v%d' % (M2 + h, S_T0, M2 + h)]
        for i in range(4):
            m += ['v_fma_f32 v%d, v%d, s%d, v%d' % (DV, G1 + 4 * i + 2 * h, S_T0, NM + h), 'v_fmac_f32 v%d, v%d, v%d' % (M2 + h, DV, DV)]
    m += allsum4([M2, M2 + 1], DV)
    for h in range(2):
        m += ['v_mov_b32 v%d, 0x%x' % (DV + h, f2u(1e-5)), 'v_fmac_f32 v%d, 0x%x, v%d' % (DV + h, f2u(1.0 / 16), M2 + h),
              'v_rsq_f32 v%d, v%d' % (RS + h, DV + h)]
    m += [('ds_write_b64 v%d, v[%d:%d]' % (vSW, NM, NM + 1), 'tw'), ('ds_write_b64 v%d, v[%d:%d] offset:128' % (vSW, RS, RS + 1), 'tw')]
    fl.add(unpk(m), opt.get('proc', 32 * 14 + 8))
    e.wait(lds=[('w', 1), ('x', 0, 0)])

    for s in range(16):
        last = s == 15
        mark('s%d' % s)
        ops = w_ops(s + 3) + x_ops(s + 3) if s + 3 < 16 else None
        qs = sum([q_ops(t) for t in range(4 * (s - 14), min(NQ1, 4 * (s - 13)))], []) if s >= 14 else []
        qn = q_ops(4 * (s - 13))[0][0][:1] if s >= 13 and 4 * (s - 13) < NQ1 else []
        for g in range(8):
            for j in range(4):
                f = 2 * g + (j >> 1); tb = j & 1
                ks, cb = divmod(f, 8)
                c = vr(acc(tb, cb), 4)
                idx = 32 * s + 4 * g + j
                a('v_mfma_f32_16x16x32_bf16 %s, %s, %s, %s' % (c, xa(s, ks, tb), vr(WR + 4 * ((16 * s + f) % 8), 4), '0' if s == 0 and ks == 0 else c))
                used = 0
                if tb == 0:
                    if j == 0 and ops and ops[g][0]: e(*ops[g][0][0])
                    elif ops and s + 3 < 15 and (g, j) in ((5, 0), (5, 2), (6, 0), (7, 2)):
                        a(adv[[(5, 0), (5, 2), (6, 0), (7, 2)].index((g, j))])
                    elif j == 0 and g < len(qs): e(*qs[g][0][1])
                    elif j == 2 and g + 1 < len(qs): e(*qs[g + 1][0][0])
                    elif j == 2 and g == 7 and qn: e(*qn[0])
                    else: fl.pre(idx)
                    if f + D < 16 or not last:
                        for r in p1_reads(16 * s + f + D): e(r, ('w', 16 * s + f + D))
                        used = 2
                elif j == 1:
                    if ops: e(*ops[g][1]); used = 2
                    elif g < len(qs): e(*qs[g][1]); used = 2
                    elif fv.q: fv.post(idx, 0); used = 2
                    else: fl.pre(idx)
                else:
                    nf = 16 * s + 2 * g + 2
                    need = [('w', nf + 1)]
                    if g == 3: need.append(('x', s, 1))
                    if g == 7: need.append(('x', s + 1, 0))
                    if g == 4 and not last:
                        arr = ARR <= s < ARR + NARR
                        e.wait(lds=need, vm=[('s', s + 1)] + (['pub'] if arr else []) + (['poll'] if s == CHK else []))
                        a('s_barrier')
                        if arr:
                            e('buffer_atomic_add v%d, v%d, s[%d:%d], s%d offen sc1' % (vONE, vPA, SRD_D, SRD_D + 3, S_AR))
                            a('s_sub_u32 s%d, s%d, 256' % (S_AR, S_AR))
                            a('s_and_b32 s%d, s%d, 0xfff' % (S_AR, S_AR))
                        if s == CHK:
                            spin(a, e, poll1, vPV, '0x80', S_T0)
                    elif not (last and g == 7):
                        e.wait(lds=need)
                    if not last and g >= 4:
                        e(xread(s + 1, (g - 4) >> 1, g & 1), ('x', s + 1, (g - 4) >> 1)); used = 2
                fl.post(idx, used)
    mark('p1end')
    WO = WR + 24
    wols = [([], ('buffer_load_dwordx4 %s, v%d, s[%d:%d], 0 offen offset:%d' % (vr(WO + 4 * i, 4), vX16, SRD_T, SRD_T + 3, 1024 * i), 'wo')) for i in range(2)]
    if opt.get('wo_early', 1): burst(wols); wols = []
    fl.flush()
    e.wait(lds=['tw'])
    a('s_barrier')
    mark('bar1')
    for tb in range(2):
        e('ds_read_b128 %s, v%d offset:%d' % (vr(MEA + 4 * tb, 4), vSA, 64 * tb), 't1')
    for cb in range(8): e('ds_read_b32 v%d, v%d offset:%d' % (CSK + cb, vCB, 256 + 64 * cb), 't1')
    for tb in range(2):
        e('ds_read_b128 %s, v%d offset:%d' % (vr(RSA + 4 * tb, 4), vSA, 128 + 64 * tb), 't2')
    for tb in range(2):
        e('ds_read_b32 v%d, v%d offset:%d' % (MEB + tb, vSB, 64 * tb), 't2')
        e('ds_read_b32 v%d, v%d offset:%d' % (RSB + tb, vSB, 128 + 64 * tb), 't2')
    for cb in range(4): e('ds_read_b128 %s, v%d offset:%d' % (vr(CSQ + 4 * cb, 4), vCA, 64 * cb), 't2')
    qrest = list(range(NQ1, 16))
    burst(q_ops(qrest.pop(0)))
    a('v_sub_f32 v%d, 0, v%d' % (T + 22, NM))
    a('v_sub_f32 v%d, 0, v%d' % (T + 23, NM + 1))
    a('s_lshl_b32 s%d, s%d, 7' % (S_T1, S_PN))
    a('s_lshl_b32 s%d, s%d, 20' % (S_T0, S_HP))
    a('s_add_u32 s%d, s%d, s%d' % (S_T1, S_T1, S_T0))
    a('s_add_u32 s%d, s%d, %d' % (S_T1, S_T1, SM_MX))
    e('buffer_store_dwordx2 v[%d:%d], v%d, s[%d:%d], s%d offen %s' % (T + 22, T + 23, vMX, SRD_O, SRD_O + 3, S_T1, hf))
    a('s_mov_b32 s%d, 0x%x' % (S_T0, f2u(LOG2E)))
    KF, VF = G1, G2
    e.wait(lds=['t1'])
    for cb in range(8):
        r, md = bc(CSK + cb, 1, 3)
        for i in range(4): a(pk('fma', 8 * cb + 2 * i, MEA + 2 * i, r, 8 * cb + 2 * i, md))
        if cb == 4: burst(q_ops(qrest.pop(0)))
    e.wait(lds=['t2'])
    a('s_barrier')
    mark('bar2')
    m = ['v_mul_f32 v%d, s%d, v%d' % (RLA + i, S_T0, RSA + i) for i in range(8)]
    m += ['v_mul_f32 v%d, s%d, v%d' % (RLB + i, S_T0, RSB + i) for i in range(2)]
    m += [pk('mul', 32 + 2 * i, 32 + 2 * i, RSA + 2 * (i & 3)) for i in range(16)]
    m += ['v_cvt_pk_bf16_f32 v%d, v%d, v%d' % (VF + i, 32 + 2 * i, 33 + 2 * i) for i in range(16)]
    wr_v = ['ds_write_b128 v%d, %s offset:%d' % (vEW, vr(VF + 4 * i, 4), 4096 + 1024 * i) for i in range(4)]
    wr_k = ['ds_write_b128 v%d, %s offset:%d' % (vEW, vr(KF + 4 * i, 4), 1024 * i) for i in range(4)]
    for half in range(2):
        b = 16 * half
        p = phi8([b + 2 * i for i in range(8)], T, lambda i, n: (RLA + 2 * (i & 3), ''), lambda i, n: (RSA + 2 * (i & 3), ''), S_1, S_E)
        p += ['v_cvt_pk_bf16_f32 v%d, v%d, v%d' % (KF + 8 * half + i, b + 2 * i, b + 2 * i + 1) for i in range(8)]
        w = wr_v if half == 0 else wr_k[:2]
        step = len(p) // len(w)
        for i, x in enumerate(w): p.insert(i * (step + 1), x)
        m += p
    m += wr_k[2:]
    side = flat(sum([q_ops(t) for t in qrest], []) + wols)
    weave(e, m, side, opt.get('wv1', len(m) // len(side)))
    mark('phik')
    e.wait(vm=['wo'])
    a('v_lshlrev_b32 v62, 16, v%d' % WO)
    a('v_and_b32 v63, s%d, v%d' % (S_M, WO))
    for i in range(1, 8):
        a('v_lshlrev_b32 v60, 16, v%d' % (WO + i))
        a('v_and_b32 v61, s%d, v%d' % (S_M, WO + i))
        a(pk('add', 62, 62, 60))
    a('v_add_f32 v62, v62, v63')
    S_KB, S_ZB = S_G1, S_G2
    a('s_lshl_b32 s%d, s%d, 11' % (S_KB, S_WAVE))
    a('s_add_u32 s%d, s%d, s%d' % (S_KB, S_KB, S_KVA))
    a('s_lshl_b32 s%d, s%d, 6' % (S_ZB, S_WAVE))
    a('s_add_u32 s%d, s%d, s%d' % (S_ZB, S_ZB, S_KVA))
    a('s_add_u32 s%d, s%d, 8192' % (S_ZB, S_ZB))
    a('s_add_u32 s%d, s%d, 8448' % (S_AR, S_KVA))
    e.wait(vm=[('q', 3)]); e.wait_all(lds=True)
    a('s_barrier')
    mark('bar3')
    EX = lambda w, j: vr((G1 + 12 * w + 4 * j) if w < 2 else (T + 12 * (w - 2) + 4 * j), 4)
    for w in range(4):
        e('ds_read_b128 %s, v%d offset:%d' % (EX(w, 0), vEK, 8192 * w), ('e', w))
        e('ds_read_b128 %s, v%d offset:%d' % (EX(w, 1), vEV, 8192 * w), ('e', w))
        e('ds_read_b128 %s, v%d offset:%d' % (EX(w, 2), vEV, 8192 * w + 1024), ('e', w))
    KV, PQ = 48, 32
    a('v_and_b32 v60, 3, v%d' % vL)
    a('v_cmp_eq_u32 vcc, 1, v60')
    a('v_cmp_eq_u32 s[68:69], 2, v60')
    a('v_cmp_eq_u32 s[100:101], 3, v60')
    a('v_mov_b32 v%d, 0' % vP)
    order = [(t, ks, cb) for t in range(4) for ks in range(2) for cb in range(4)]
    order += [(t, ks, cb) for cb in range(4) for t in range(4, 16) for ks in range(2)]
    def p2_reads(gf):
        t, ks, cb = order[gf]
        return wread(qreg[t >> 1], ks, t & 1, cb, WR + 4 * (gf % 8))
    for w in range(4):
        e.wait(lds=[('e', w)])
        for j in range(3):
            d = vr(KV + 4 * j, 4)
            a('v_mfma_f32_16x16x32_bf16 %s, %s, %s, %s' % (d, EX(w, 0), EX(w, 1 + j) if j < 2 else vr(ONE, 4), d if w else '0'))
            if w >= 2:
                for r in p2_reads(3 * (w - 2) + j): e(r, ('v', 3 * (w - 2) + j))
    fl = Fill(e)
    fl.add([('buffer_atomic_add_f32 v%d, v%d, s[%d:%d], s%d offen offset:%d' % (KV + i, vL4, SRD_S, SRD_S + 3, S_KB, 256 * i), 'at') for i in range(8)], 5)
    fl.add(['v_cndmask_b32 v%d, v%d, v%d, vcc' % (KV + 8, KV + 8, KV + 9),
            'v_cndmask_b32 v%d, v%d, v%d, s[68:69]' % (KV + 8, KV + 8, KV + 10),
            'v_cndmask_b32 v%d, v%d, v%d, s[100:101]' % (KV + 8, KV + 8, KV + 11),
            ('buffer_atomic_add_f32 v%d, v%d, s[%d:%d], s%d offen' % (KV + 8, vZA, SRD_S, SRD_S + 3, S_ZB), 'at')])
    d = Asm(); wave_allsum(d, [62], 63)
    fl.add([x.strip() for x in d.lines] + ['v_mul_f32 v62, 0x%x, v62' % f2u(1.0 / 1024), 'v_cvt_pk_bf16_f32 v62, v62, v62',
           ('buffer_store_short v62, v%d, s[%d:%d], s%d offen %s' % (vWB, SRD_O, SRD_O + 3, S_WB, hf), 'at' if mega else None)])
    def touch(rounds):
        d = Asm(); ld = gu_touch(d, rounds, vT, vJ, S_WOFF, S_XOFF)
        return [x.strip() for x in d.lines] + [ld]
    if opt.get('gu'): fl.add(touch(opt['gu']), opt.get('gu_at', 0))
    vKW, vZW, vKR, vZR = vCW, vSW, vSA, vSB
    fl.add(['s_lshr_b32 s%d, s%d, 1' % (S_T0, S_WAVE), 's_and_b32 s%d, s%d, 1' % (S_T1, S_WAVE), 's_lshl_b32 s%d, s%d, 3' % (S_T1, S_T1),
            's_add_u32 s%d, s%d, %d' % (S_T1, S_T1, EXCH), 's_lshl_b32 s%d, s%d, 11' % (S_QSL, S_T0), 's_add_u32 s%d, s%d, s%d' % (S_QSL, S_QSL, S_T1),
            's_lshl_b32 s%d, s%d, 6' % (S_T0, S_T0), 's_add_u32 s%d, s%d, s%d' % (S_T0, S_T0, S_T1),
            'v_add_u32 v%d, s%d, v%d' % (vKW, S_QSL, vX16), 'v_add_u32 v%d, s%d, v%d' % (vZW, S_T0, vG16),
            'v_add_u32 v%d, %d, v%d' % (vKR, EXCH, vX16), 'v_add_u32 v%d, %d, v%d' % (vZR, EXCH, vG16),
            's_lshl_b32 s%d, s%d, 16' % (S_T0, S_PN), 's_lshl_b32 s%d, s%d, 12' % (S_T1, S_HP), 's_add_u32 s%d, s%d, s%d' % (S_T0, S_T0, S_T1),
            's_add_u32 s%d, s%d, %d' % (S_T0, S_T0, WS_O),
            's_add_u32 s%d, s%d, s%d' % (SRD_Q, P_WS, S_T0), 's_addc_u32 s%d, s%d, 0' % (SRD_Q + 1, P_WS + 1), 's_mov_b32 s%d, 4096' % (SRD_Q + 2)])
    if mega: fl.add(mega.c_early_setup())
    def qphi(cb):
        regs = [accq(tb, cb) + 2 * h for tb in range(2) for h in range(2)]
        o = []
        for i, r in enumerate(regs):
            x, md = bc(MEB + (i >> 1), 1, 3); o.append(pk('fma', r, CSQ + 4 * cb + 2 * (i & 1), x, r, md))
        o += phi8(regs, T, lambda i, n: bc(RLB + (i >> 1), 1, n), lambda i, n: bc(RSB + (i >> 1), 1, n), S_1, S_E)
        o += ['v_cvt_pk_bf16_f32 v%d, v%d, v%d' % (PQ + 8 * (i >> 1) + 2 * cb + (i & 1), r, r + 1) for i, r in enumerate(regs)]
        return o
    poll2 = 'buffer_load_dword v%d, v%d, s[%d:%d], s%d offen sc1' % (vPV, vP, SRD_S, SRD_S + 3, S_AR)
    def check2():
        mark('prepoll')
        e.wait(vm=['poll']); spin(a, e, poll2, vPV, '16', S_T0)
        mark('polled')
    rb = [('buffer_load_dword v%d, v%d, s[%d:%d], s%d offen offset:%d sc1' % (KV + i, vL4, SRD_S, SRD_S + 3, S_KB, 256 * i), 'rb') for i in range(8)]
    rb.append(('buffer_load_dwordx4 %s, v%d, s[%d:%d], s%d offen sc1' % (vr(KV + 8, 4), vG16, SRD_S, SRD_S + 3, S_ZB), 'rb'))
    if opt.get('gu2'): rb += touch(opt['gu2'])
    for cb in range(3): fl.add(unpk(qphi(cb)), 64 + 48 * (cb + 1) + 5)
    fv = Fill(e)
    if mega: mega.c_early_loads(fv, 4 * opt.get('sig', 24) + 4, qreg)
    fv.add([(poll2, 'poll')], opt.get('poll2', 160))
    fv.add([check2] + rb, opt.get('chk2', 200))
    SIG, PB = opt.get('sig', 24), 12
    e.wait(lds=[('v', 1)])
    mark('p2start')
    CAP = opt.get('cap', 3)
    for g in range(64):
        for j in range(4):
            gf = 2 * g + (j >> 1); tb = j & 1; idx = 4 * g + j
            t, ks, cb = order[gf]
            c = vr(accq(tb, cb), 4)
            a('v_mfma_f32_16x16x32_bf16 %s, %s, %s, %s' % (c, vr(WR + 4 * (gf % 8), 4), xa(t, ks, tb), '0' if gf < 4 else c))
            used = 0
            q = fv if fv.q and fv.q[0][2] <= idx else fl
            if j < 3 or g == 63: q.pre(idx)
            if tb == 0:
                if gf + D < 128:
                    for r in p2_reads(gf + D): e(r, ('v', gf + D))
                    used = 2
            elif j == 3 and g < 63:
                if g == PB and SIG > PB:
                    e.wait(lds=[('v', 2 * g + 3)], vm=[('q', 15)])
                    a('s_barrier')
                elif g == SIG:
                    mark('presig')
                    assert not any(t == 'at' for _, t, _ in fl.q)
                    e.wait(lds=[('v', 2 * g + 3)], vm=['at'])
                    a('s_barrier')
                    mark('sig')
                    e('buffer_atomic_add v%d, v%d, s[%d:%d], s%d offen sc1' % (vONE, vPA, SRD_S, SRD_S + 3, S_AR)); used = 2
                else:
                    e.wait(lds=[('v', 2 * g + 3)])
            q.post(idx, used, CAP if (idx >= 117 and j == 1 and q is fl) else 2)
    mark('p2end')
    fv.flush()
    fl.flush()
    mark('prerb')
    e.wait(vm=['rb'])
    mark('rb')
    for i in range(6): a('v_cvt_pk_bf16_f32 v%d, v%d, v%d' % (G1 + i, KV + 2 * i, KV + 2 * i + 1))
    e('ds_write_b64 v%d, v[%d:%d]' % (vKW, G1, G1 + 1))
    e('ds_write_b64 v%d, v[%d:%d] offset:1024' % (vKW, G1 + 2, G1 + 3))
    e('ds_write_b64 v%d, v[%d:%d] offset:4096' % (vZW, G1 + 4, G1 + 5))
    p = qphi(3)
    for x in p[:16]: a(x)
    e.wait_all(lds=True)
    a('s_barrier')
    for h2 in range(2):
        for eb in range(2): e('ds_read_b128 %s, v%d offset:%d' % (vr(WR + 12 * h2 + 4 * eb, 4), vKR, 2048 * h2 + 1024 * eb))
        e('ds_read_b128 %s, v%d offset:%d' % (vr(WR + 12 * h2 + 8, 4), vZR, 4096 + 64 * h2))
    if mega: mega.a_tail1()
    for x in p[16:]: a(x)
    e.wait_all(lds=True)
    OD = G1
    for h2 in range(2):
        for tb in range(2):
            for j in (2, 0, 1):
                d = OD + 12 * (2 * h2 + tb) + 4 * j
                a('v_mfma_f32_16x16x32_bf16 %s, %s, %s, 0' % (vr(d, 4), vr(WR + 12 * h2 + 4 * j, 4), vr(PQ + 8 * tb + 4 * h2, 4)))
    a('s_nop 2')
    for i in range(4): a('v_add_f32 v%d, s%d, v%d' % (OD + 12 * i + 8, S_E, OD + 12 * i + 8))
    for i in range(4): a('v_rcp_f32 v%d, v%d' % (OD + 12 * i + 8, OD + 12 * i + 8))
    for i in range(4):
        d = OD + 12 * i
        r, md = bc(d + 8, 1, 2)
        for q in range(0, 8, 2): a(pk('mul', d + q, d + q, r, None, md))
        for q in range(4): a('v_cvt_pk_bf16_f32 v%d, v%d, v%d' % (4 * i + q, d + 2 * q, d + 2 * q + 1))
        e('buffer_store_dwordx4 %s, v%d, s[%d:%d], 0 offen offset:%d %s' % (vr(4 * i, 4), vX16, SRD_Q, SRD_Q + 3, 1024 * i, opt.get('sflag', hf)), 'out')
    if mega: return
    if stamp:
        a('s_waitcnt vmcnt(0)')
        st.take(a)
        st.flush(a, P_WS, 's2', 16, 'v%d' % vTID)
    a.label(end)
    a('s_endpgm')
    kernel_desc(a, name, 512, 102, 256)
```

```python
from gemm import *
from kern_a2 import *
from kern_ace import swz_src, swz_rd

SRD_S, SRD_O, SRD_Y, SRD_Z = 44, 48, 56, 96
D_SB, D_U = 28672, 5
D_TAB = D_SB * D_U

def lines(fn, *args):
    d = Asm(); fn(d, *args)
    return [x.strip() for x in d.lines]

class Mega:
    def __init__(self, a, name, stamp, opt):
        self.a = a; self.name = name; self.opt = opt; self.stamp = stamp
        self.st = Stamps(stamp, 0)
        self.e = Stream(a)
        self.end = a.newlabel('Lend')
        self.marks = opt.get('marks', ['a_out', 'c_out', 'd_out', 'e_go'])
    def mark(self, x):
        self.a.raw(';@at ' + x)
        if x in self.marks: self.st.take(self.a)
    def issue(self, it):
        a = self.a
        for p in it[0]: a(p)
        if it[0] and 'm0' in it[0][-1]: a('s_nop 0')
        self.e(it[1], it[2])
    def lane(self, v):
        return ['v_mbcnt_lo_u32_b32 v%d, -1, 0' % v, 'v_mbcnt_hi_u32_b32 v%d, -1, v%d' % (v, v)]
    def handoff(self, pre, n1, s_arr, s_poll, nprod, vL, t, nm):
        a, e = self.a, self.e
        self.mark(nm + '_out')
        for it in pre[:n1]: self.issue(it)
        a('s_lshl_b32 s27, s%d, 6' % S_WAVE)
        a('v_add_lshl_u32 v%d, v%d, s27, 22' % (t, vL))
        a('v_mov_b32 v%d, 1' % (t + 1))
        a('v_and_b32 v%d, %d, v%d' % (t + 2, nprod - 1, vL))
        a('v_lshlrev_b32 v%d, 7, v%d' % (t + 2, t + 2))
        e.wait(vm=['out'])
        a('s_barrier')
        self.mark(nm + '_drained')
        e('buffer_store_dword v%d, v%d, s[%d:%d], s%d offen sc1' % (t + 1, t, SRD_S, SRD_S + 3, s_arr))
        for it in pre[n1:]: self.issue(it)
        a.raw(';@warm ' + nm + '2')
        l = a.newlabel('Lnopoll')
        a('s_cmp_lg_u32 s%d, %d' % (S_WAVE, self.opt.get('pollwave', 0)))
        a('s_cbranch_scc1 %s' % l)
        poll = 'buffer_load_dword v%d, v%d, s[%d:%d], s%d offen sc1' % (t + 3, t + 2, SRD_S, SRD_S + 3, s_poll)
        a(poll)
        a('s_waitcnt vmcnt(0)')
        self.mark(nm + '_pre')
        spin(a, e, poll, t + 3, '1', 27, self.opt.get('sleep', 0))
        a.label(l)
        e.wait_all(vm=True)
        a('s_barrier')
        self.mark(nm + '_seen')

    C_XT, C_WB = EXCH + 8192, EXCH + 24576
    cL, cX, cD, cRd, cWB, cTok, cXs, cXR, cSt, cH = 100, 101, 102, 104, 112, 113, 156, 118, 122, 124
    def c_early_setup(self):
        a = self.a; d = Asm()
        S_RT, S_CT, S_T0, S_T1, S_WV = 25, 26, 98, 99, 29
        vL, vXs = self.cL, self.cXs
        t2, t3, t4, t5 = 152, 153, 154, 155
        d('s_lshl_b32 s96, s25, 4')
        d('s_add_u32 s96, s96, s26')
        d('s_lshl_b32 s96, s96, 7')
        d('s_add_u32 s96, s96, %d' % CNT_OFF)
        for x in self.lane(vL): d(x)
        d('s_and_b32 s%d, s2, 1' % S_RT)
        d('s_lshl_b32 s%d, s%d, 3' % (S_RT, S_RT))
        d('s_and_b32 s%d, s2, 2' % S_T0)
        d('s_lshl_b32 s%d, s%d, 1' % (S_T0, S_T0))
        d('s_add_u32 s%d, s%d, s%d' % (S_RT, S_RT, S_T0))
        d('s_bfe_u32 s%d, s2, 0x20003' % S_T0)
        d('s_add_u32 s%d, s%d, s%d' % (S_RT, S_RT, S_T0))
        d('s_and_b32 s%d, s2, 4' % S_CT)
        d('s_lshl_b32 s%d, s%d, 1' % (S_CT, S_CT))
        d('s_lshr_b32 s%d, s2, 5' % S_T0)
        d('s_add_u32 s%d, s%d, s%d' % (S_CT, S_CT, S_T0))
        d('s_lshl_b32 s30, s%d, 2' % S_RT)
        d('s_add_u32 s30, s30, s%d' % S_WAVE)
        swz_src(d, vL, 2048, self.cD, t2, t3)
        d('s_lshl_b32 s%d, s%d, 15' % (S_T0, S_WAVE))
        d('v_add_u32 v%d, s%d, v%d' % (self.cD, S_T0, self.cD))
        d('v_add_u32 v%d, %d, v%d' % (self.cD + 1, 8 * 2048 - 1024, self.cD))
        d('s_lshl_b32 s%d, s%d, 11' % (S_WV, S_WAVE))
        d('s_lshl_b32 s%d, s%d, 7' % (S_T1, S_CT))
        d('s_add_u32 s%d, s%d, s%d' % (SRD_W, P_WO, S_T1))
        d('s_addc_u32 s%d, s%d, 0' % (SRD_W + 1, P_WO + 1))
        d('s_sub_u32 s%d, %d, s%d' % (SRD_W + 2, 1024 * 2048, S_T1))
        d('s_lshl_b32 s%d, s30, 16' % S_T0)
        d('s_add_u32 s%d, s%d, s%d' % (S_T0, S_T0, S_T1))
        srd_off(d, SRD_Y, P_X, 's%d' % S_T0, 31 * 2048 + 128)
        d('s_lshl_b32 s97, s%d, 12' % S_WAVE)
        d('s_add_u32 s97, s97, %d' % self.C_XT)
        d('v_lshrrev_b32 v%d, 3, v%d' % (t2, vL))
        d('v_lshlrev_b32 v%d, 11, v%d' % (t3, t2))
        d('v_lshrrev_b32 v%d, 4, v%d' % (t4, vL))
        d('v_and_b32 v%d, 7, v%d' % (t5, vL))
        d('v_xor_b32 v%d, v%d, v%d' % (t5, t4, t5))
        d('v_lshl_add_u32 v%d, v%d, 4, v%d' % (vXs, t5, t3))
        d('v_xor_b32 v%d, 64, v%d' % (t3, vXs))
        d('v_add_u32 v%d, %d, v%d' % (vXs + 1, 8 * 2048 - 1024, t3))
        d('v_add_u32 v%d, %d, v%d' % (vXs + 2, 2 * (8 * 2048 - 1024), vXs))
        d('v_add_u32 v%d, %d, v%d' % (vXs + 3, 3 * (8 * 2048 - 1024), t3))
        if self.opt.get('c', {}).get('slow', 1):
            d('v_and_b32 v150, 7, v%d' % vL)
            d('v_lshlrev_b32 v150, 11, v150')
            d('s_lshr_b32 s%d, s2, 3' % S_T0)
            d('s_lshl_b32 s%d, s%d, 2' % (S_T0, S_T0))
            d('s_add_u32 s%d, s%d, s%d' % (S_T0, S_T0, S_WAVE))
            d('s_lshl_b32 s%d, s%d, 14' % (S_T0, S_T0))
            d('s_and_b32 s%d, s2, 4' % S_T1)
            d('s_lshl_b32 s%d, s%d, 8' % (S_T1, S_T1))
            d('s_add_u32 s%d, s%d, s%d' % (S_T0, S_T0, S_T1))
            d('s_add_u32 s%d, s%d, 384' % (S_T0, S_T0))
            d('s_mov_b32 s%d, s%d' % (SRD_X0, P_WO))
            d('s_mov_b32 s%d, s%d' % (SRD_X0 + 1, P_WO + 1))
            d('s_mov_b32 s%d, %d' % (SRD_X0 + 2, 1024 * 2048))
            d('buffer_load_dword v117, v150, s[%d:%d], s%d offen' % (SRD_X0, SRD_X0 + 3, S_T0))
        self.cw = {}
        for s in range(16):
            self.cw[s] = [(['s_mov_b32 s31, %d' % (s << 17), 's_add_u32 m0, s%d, %d' % (S_WV, s * 8192)] if j == 0 else [],
                           'buffer_load_dwordx4 v%d, s[%d:%d], s31 offen offset:%d lds' % (self.cD + j, SRD_W, SRD_W + 3, 1024 * j), 'W') for j in range(2)]
        self.cx = [(['s_mov_b32 m0, s97'] if i == 0 else [], 'buffer_load_dwordx4 v%d, s[%d:%d], 0 offen offset:%d lds' % (vXs + i, SRD_Y, SRD_Y + 3, 1024 * i), 'W') for i in range(4)]
        return [x.strip() for x in d.lines]
    def c_early_loads(self, fv, at, qreg):
        ne = self.opt.get('c', {}).get('early', 12)
        early = list(self.cx) + sum([self.cw.pop(s) for r in qreg[:2] for s in (r // 8192, r // 8192 + 1)], [])
        for p, ld, tg in early[:ne]:
            fv.add(p + (['s_nop 0'] if p else []) + [(ld, tg)], at)
        self.cw = early[ne:] + sum([self.cw[s] for s in sorted(self.cw)], [])
    def a_tail1(self):
        n0 = self.opt.get('c', {}).get('n0', 6)
        for it in self.cw[:n0]: self.issue(it)
        self.cw = self.cw[n0:]

    def phase_c(self):
        a, e, opt = self.a, self.e, self.opt.get('c', {})
        S_RT, S_CT, S_T0, S_T1, S_WV, S_PN = 25, 26, 27, 28, 29, 30
        vL, vX, vRdB, vWB, vTok, vXs, vXR, vSt, vH = self.cL, self.cX, self.cRd, self.cWB, self.cTok, self.cXs, self.cXR, self.cSt, self.cH
        RES, SC, T, WR = 128, 144, 148, 48
        su = Asm()
        su('v_lshlrev_b32 v%d, 4, v%d' % (vX, vL))
        su('s_lshl_b32 s54, s%d, 16' % S_PN)
        su('s_add_u32 s%d, s54, %d' % (S_T0, WS_O))
        srd_off(su, SRD_X0, P_WS, 's%d' % S_T0, 65536)
        su('s_lshl_b32 s%d, s%d, 12' % (S_T0, S_CT))
        su('s_add_u32 s%d, s%d, s54' % (S_T0, S_T0))
        su('s_add_u32 s%d, s%d, %d' % (S_T0, S_T0, WS_H))
        srd_off(su, SRD_X1, P_WS, 's%d' % S_T0, 4096)
        su('s_lshl_b32 s55, s%d, 7' % S_PN)
        su('s_lshl_b32 s53, s%d, 11' % S_RT)
        su('s_add_u32 s53, s53, %d' % CNT_OFF)
        su('s_add_u32 s63, s55, %d' % SM_MX)
        su('s_add_u32 s60, s%d, %d' % (S_WV, self.C_WB))
        t2, t3, t4, t5 = 152, 153, 154, 155
        su('v_lshrrev_b32 v%d, 4, v%d' % (t4, vL))
        su('v_and_b32 v%d, 15, v%d' % (t2, vL))
        su('v_lshlrev_b32 v%d, 2, v%d' % (vTok, t2))
        su('v_lshrrev_b32 v%d, 1, v%d' % (t3, t2))
        su('v_lshrrev_b32 v%d, 5, v%d' % (t5, vL))
        su('v_xor_b32 v%d, v%d, v%d' % (t3, t3, t5))
        su('v_lshlrev_b32 v%d, 4, v%d' % (t3, t3))
        su('v_lshl_add_u32 v%d, v%d, 7, v%d' % (t3, t2, t3))
        su('v_and_b32 v%d, 1, v%d' % (t2, t4))
        su('v_lshl_add_u32 v%d, v%d, 3, v%d' % (t3, t2, t3))
        su('v_add_u32 v%d, s97, v%d' % (vXR, t3))
        for cb in range(1, 4): su('v_xor_b32 v%d, %d, v%d' % (vXR + cb, 32 * cb, vXR))
        su('v_lshl_add_u32 v%d, v%d, 4, s60' % (vWB, t4))
        su('v_lshlrev_b32 v%d, 20, v%d' % (t5, t5))
        su('v_lshl_add_u32 v%d, v%d, 2, v%d' % (vSt, vL, t5))
        swz_rd(su, vL, vRdB, t2, t3)
        for u in range(4): su('v_add_u32 v%d, 0x10000, v%d' % (vRdB + 4 + u, vRdB + u))
        n1 = opt.get('n1', 8)
        pre = list(self.cw)
        p, ld, tg = pre[n1 - 2]
        pre[n1 - 2] = ([x.strip() for x in su.lines] + p, ld, tg)
        self.handoff(pre, n1, 96, 53, 16, vL, vH, 'a')
        accb = lambda tb, cb: 4 * (tb * 4 + cb) if cb < 4 else 32 + 4 * tb
        xr = lambda s, ks, tb: ar(16 * s + 8 * ks + 4 * tb, 4)
        ops = []
        for s in range(16):
            for i in range(4):
                ops.append((['s_mov_b32 s31, %d' % (s * 4096)] if i == 0 else [],
                            'buffer_load_dwordx4 %s, v%d, s[%d:%d], s31 offen offset:%d sc1' % (xr(s, i >> 1, i & 1), vX, SRD_X0, SRD_X0 + 3, i * 1024), ('X', s, i >> 1)))
        for it in ops[:2]: self.issue(it)
        a('s_mov_b32 m0, s60')
        a('s_mov_b32 s%d, %d' % (S_T0, SM_WBAR))
        for j in range(2): e('buffer_load_dwordx4 v%d, s[%d:%d], s%d offen offset:%d sc1 lds' % (vX, SRD_O, SRD_O + 3, S_T0, 1024 * j), 'wb')
        NPRO = opt.get('npro', 8)
        for it in ops[2:NPRO]: self.issue(it)
        ops = ops[NPRO:]
        pos = opt.get('res_at', 24)
        ops[pos:pos] = [([], 'buffer_load_dword v%d, v%d, s[%d:%d], s63 offen offset:%d sc1' % (SC + 2 * tb, vTok, SRD_O, SRD_O + 3, 64 * tb), 'res') for tb in range(2)]
        D = 4; RING = 10; NF = 160
        def reads(gf):
            s, f = divmod(gf, 10); ks, cb = divmod(f, 5); w = WR + 4 * (gf % RING)
            if cb == 4: return ['ds_read_b128 %s, v%d offset:%d' % (vr(w, 4), vWB, (2 * s + ks) * 64)]
            o = s * 8192 + ks * 4096
            return ['ds_read_b64_tr_b16 %s, v%d offset:%d' % (vr(w + 2 * h, 2), vRdB + cb + 4 * (o >> 16), (o & 0xffff) + 2048 * h) for h in range(2)]
        span = opt.get('span', 62)
        sched = {}
        for i, it in enumerate(ops):
            g = (i * span) // len(ops)
            idx = 4 * g + 1
            if idx in sched: idx += 2
            assert idx not in sched
            sched[idx] = it
        fl = Fill(e)
        fl.add([('ds_read_b64 v[%d:%d], v%d offset:%d' % (RES + 2 * (tb * 4 + cb), RES + 2 * (tb * 4 + cb) + 1, vXR + cb, 2048 * tb), 'xr') for tb in range(2) for cb in range(4)], 8)
        XF = 160
        fl.add([lambda: e.wait(lds=['xr'])], 40)
        for i in range(16): fl.add(['v_lshlrev_b32 v%d, 16, v%d' % (XF + 2 * i, RES + i), 'v_and_b32 v%d, s62, v%d' % (XF + 2 * i + 1, RES + i)])
        fl.add(self.d_setup())
        for gf in range(D):
            for r in reads(gf): e(r, ('w', gf))
        e.wait(lds=[('w', 1)], vm=['wb'])
        self.mark('c_go')
        for gf in range(NF):
            s, f = divmod(gf, 10); ks, cb = divmod(f, 5)
            for tb in range(2):
                idx = 2 * gf + tb
                c = vr(accb(tb, cb), 4)
                a('v_mfma_f32_16x16x32_bf16 %s, %s, %s, %s' % (c, vr(WR + 4 * (gf % RING), 4), xr(s, ks, tb), '0' if gf < 5 else c))
                used = 0
                if tb == 0:
                    if idx + 1 in sched and sched[idx + 1][0]: a(sched[idx + 1][0][0])
                    else: fl.pre(idx)
                    if gf + D < NF:
                        for r in reads(gf + D): e(r, ('w', gf + D))
                        used = 2
                else:
                    if gf & 1 and gf + 1 < NF:
                        vm = [('X',) + divmod(x // 5, 2) for x in (gf + 1, gf + 2)]
                        assert not any(g2 >= idx and it[2] in vm for g2, it in sched.items()), (gf, vm)
                        e.wait(lds=[('w', gf + 2)], vm=vm)
                    elif idx not in sched: fl.pre(idx)
                    if idx in sched: e(*sched[idx][1:]); used = 2
                fl.post(idx, used)
        self.mark('c_loopend')
        fl.flush()
        a('s_barrier')
        n0 = self.opt.get('d', {}).get('n0', 5)
        for it in self.dw[:n0]: self.issue(it)
        self.dw = self.dw[n0:]
        e.wait(vm=['res'])
        a('s_nop %d' % (1 if n0 >= 4 else 7))
        for tb in range(2): a('v_add_f32 v%d, v%d, v%d' % (SC + 2 * tb, SC + 2 * tb, accb(tb, 4)))
        for tb in range(2):
            for i in range(8 * tb, 8 * tb + 8):
                a(pk('add', XF + 2 * i, XF + 2 * i, SC + 2 * tb, None, 'op_sel_hi:[1,0] neg_lo:[0,1] neg_hi:[0,1]'))
                a(pk('add', 2 * i, 2 * i, XF + 2 * i))
            for i in range(8 * tb, 8 * tb + 8): a('v_cvt_pk_bf16_f32 v%d, v%d, v%d' % (RES + i, 2 * i, 2 * i + 1))
            for kk in range(2):
                r = RES + 4 * (tb * 2 + kk)
                e('buffer_store_dwordx4 v[%d:%d], v%d, s[%d:%d], 0 offen offset:%d sc1' % (r, r + 3, vX, SRD_X1, SRD_X1 + 3, kk * 2048 + tb * 1024), 'out')
        for tb in range(2):
            s = T + 2 * tb
            a(pk('mul', s, 16 * tb, 16 * tb))
            for i in range(1, 8): a(pk('fma', s, 16 * tb + 2 * i, 16 * tb + 2 * i, s))
            a('v_add_f32 v%d, v%d, v%d' % (s, s, s + 1))
        a('s_lshl_b32 s%d, s%d, 13' % (S_T0, S_CT))
        a('s_add_u32 s%d, s%d, s55' % (S_T0, S_T0))
        a('v_permlane16_swap_b32 v%d, v%d' % (T, T + 2))
        a('v_permlane16_swap_b32 v%d, v%d' % (SC, SC + 2))
        a('v_add_f32 v%d, v%d, v%d' % (T, T, T + 2))
        a('v_mov_b32 v%d, v%d' % (T + 1, T))
        a('s_lshl_b32 s%d, s%d, 20' % (S_T1, S_CT))
        a('s_add_u32 s%d, s%d, s55' % (S_T1, S_T1))
        a('v_permlane32_swap_b32 v%d, v%d' % (T, T + 1))
        a('s_add_u32 s%d, s%d, %d' % (S_T1, S_T1, SM_MH))
        a('v_add_f32 v%d, v%d, v%d' % (T, T, T + 1))
        e('buffer_store_dword v%d, v%d, s[%d:%d], s%d offen sc1' % (T, vSt, SRD_O, SRD_O + 3, S_T0), 'out')
        e('buffer_store_dword v%d, v%d, s[%d:%d], s%d offen sc1' % (SC, vSt, SRD_O, SRD_O + 3, S_T1), 'out')
        a('s_lshl_b32 s0, s%d, 7' % S_CT)
        a('s_add_u32 s0, s0, s53')
        a('s_add_u32 s0, s0, %d' % (256 * 128))

    dL, dX, dRd, dD, dT, dJ, dA, dS, dTW, dTR, dTMP = 225, 226, 227, 230, 237, 238, 240, 244, 245, 246, 248
    dX8 = 239
    S_FT, S_ODD, S_WVO, S_DPN = 94, 95, 3, 1
    def d_setup(self):
        vL, vD, t = self.dL, self.dD, self.dTMP
        S_FT, S_ODD, S_WVO, S_PN = self.S_FT, self.S_ODD, self.S_WVO, self.S_DPN
        a = self.a
        o = self.lane(vL)
        o += ['s_and_b32 s%d, s2, 1' % S_PN, 's_lshl_b32 s%d, s%d, 2' % (S_PN, S_PN), 's_bfe_u32 s68, s2, 0x20003', 's_add_u32 s%d, s%d, s68' % (S_PN, S_PN),
              's_lshl_b32 s%d, s%d, 2' % (S_PN, S_PN), 's_add_u32 s%d, s%d, s%d' % (S_PN, S_PN, S_WAVE), 's_lshl_b32 s%d, s%d, 1' % (S_PN, S_PN),
              's_bfe_u32 s%d, s2, 0x20001' % S_FT, 's_lshl_b32 s%d, s%d, 3' % (S_FT, S_FT), 's_lshr_b32 s68, s2, 5', 's_add_u32 s%d, s%d, s68' % (S_FT, S_FT),
              's_and_b32 s%d, s%d, 1' % (S_ODD, S_FT), 's_and_b32 s68, s%d, 1' % S_WAVE, 's_mul_i32 s68, s68, %d' % (32 * 7168), 's_lshl_b32 s69, s%d, 1' % S_ODD,
              's_mul_i32 s%d, s%d, 7168' % (S_WVO, S_WAVE), 's_mul_i32 s100, s%d, 224' % S_FT]
        def wsrd():
            a('s_cmp_lt_u32 s%d, 2' % S_WAVE)
            a('s_cselect_b32 s%d, s%d, s%d' % (SRD_W, P_WG, P_WU))
            a('s_cselect_b32 s%d, s%d, s%d' % (SRD_W + 1, P_WG + 1, P_WU + 1))
            a('s_add_u32 s%d, s%d, s100' % (SRD_W, SRD_W))
            a('s_addc_u32 s%d, s%d, 0' % (SRD_W + 1, SRD_W + 1))
        o += [wsrd, 's_sub_u32 s%d, %d, s100' % (SRD_W + 2, 1024 * 7168)]
        for i in range(7):
            o += ['v_add_u32 v%d, %d, v%d' % (t, 64 * i, vL), 'v_mul_u32_u24 v%d, 4682, v%d' % (t + 1, t), 'v_lshrrev_b32 v%d, 16, v%d' % (t + 1, t + 1),
                  'v_mad_i32_i24 v%d, v%d, -14, v%d' % (t, t + 1, t), 'v_add_u32 v%d, s69, v%d' % (t, t), 'v_subrev_u32 v%d, 14, v%d' % (t + 2, t),
                  'v_min_u32 v%d, v%d, v%d' % (t, t, t + 2), 'v_mul_u32_u24 v%d, 7168, v%d' % (t + 1, t + 1), 'v_lshl_add_u32 v%d, v%d, 4, v%d' % (t + 1, t, t + 1)]
            if i & 3: o.append('v_subrev_u32 v%d, %d, v%d' % (t + 1, 1024 * (i & 3), t + 1))
            o.append('v_add_u32 v%d, s68, v%d' % (vD + i, t + 1))
        self.dw = []
        for s in range(16):
            for i in range(7):
                pre = []
                if i == 0: pre.append('s_mov_b32 s%d, %d' % (S_WOFF, s * 64 * 7168))
                if i in (0, 4): pre.append('s_add_u32 m0, s%d, %d' % (S_WVO, (s % D_U) * D_SB + 1024 * i))
                self.dw.append((pre, 'buffer_load_dwordx4 v%d, s[%d:%d], s%d offen offset:%d lds' % (vD + i, SRD_W, SRD_W + 3, S_WOFF, 1024 * (i & 3)), ('W', s)))
        return o

    def phase_d(self):
        a, e, opt = self.a, self.e, self.opt.get('d', {})
        U = D_U
        vL, vX, vRdB, vD, vT, vJ, vA, vS, vTW, vTR, T = self.dL, self.dX, self.dRd, self.dD, self.dT, self.dJ, self.dA, self.dS, self.dTW, self.dTR, self.dTMP
        S_FT, S_ODD, S_WVO, S_PN = self.S_FT, self.S_ODD, self.S_WVO, self.S_DPN
        S_T0, S_T1, S_PR, S_SG, S_SO, S_TO, S_GU, S_WD, S_PL = 27, 28, 54, 55, 60, 61, 62, 63, 31
        AST, WRA = 200, 160
        su = Asm()
        su('v_lshlrev_b32 v%d, 4, v%d' % (vX, vL))
        su('s_lshl_b32 s%d, s%d, 16' % (S_T0, S_PN))
        su('s_add_u32 s%d, s%d, %d' % (S_T0, S_T0, WS_H))
        srd_off(su, SRD_X0, P_WS, 's%d' % S_T0, 65536)
        su('s_add_u32 s%d, s%d, 65536' % (S_T0, S_T0))
        srd_off(su, SRD_X1, P_WS, 's%d' % S_T0, 65536)
        su('s_lshr_b32 s%d, s%d, 3' % (S_PL, S_PN))
        su('s_lshl_b32 s%d, s%d, 12' % (S_PL, S_PL))
        su('s_add_u32 s%d, s%d, %d' % (S_PL, S_PL, CNT_OFF + 256 * 128))
        su('v_lshrrev_b32 v%d, 2, v%d' % (T, vL))
        su('v_mul_u32_u24 v%d, 224, v%d' % (T, T))
        su('v_and_b32 v%d, 3, v%d' % (T + 1, vL))
        su('v_lshl_add_u32 v%d, v%d, 3, v%d' % (vRdB, T + 1, T))
        su('v_add_u32 v%d, %d, v%d' % (vRdB + 1, 2 * D_SB, vRdB))
        su('v_add_u32 v%d, %d, v%d' % (vRdB + 2, 4 * D_SB, vRdB))
        su('v_lshlrev_b32 v%d, 7, v%d' % (vT, vL))
        su('v_lshlrev_b32 v%d, 3, v%d' % (self.dX8, vL))
        su('s_bitcmp1_b32 s2, 0')
        su('s_cselect_b32 s%d, s%d, s%d' % (SRD_T, P_WU, P_WG))
        su('s_cselect_b32 s%d, s%d, s%d' % (SRD_T + 1, P_WU + 1, P_WG + 1))
        su('s_mov_b32 s%d, s%d' % (SRD_Z, P_WD))
        su('s_mov_b32 s%d, s%d' % (SRD_Z + 1, P_WD + 1))
        su('s_cmp_eq_u32 s%d, 0' % S_WAVE)
        su('s_cselect_b32 s%d, %d, 0' % (SRD_T + 2, 1024 * 7168))
        su('s_mov_b32 s%d, s%d' % (SRD_Z + 2, SRD_T + 2))
        su('s_mov_b32 s%d, 0x20000' % (SRD_T + 3))
        su('s_mov_b32 s%d, 0x20000' % (SRD_Z + 3))
        su('s_lshr_b32 s%d, s2, 1' % S_GU)
        su('s_lshl_b32 s%d, s%d, 13' % (S_GU, S_GU))
        su('s_lshl_b32 s%d, s2, 13' % S_WD)
        su('v_and_b32 v%d, 15, v%d' % (T, vL))
        su('v_lshrrev_b32 v%d, 4, v%d' % (T + 1, vL))
        su('v_lshlrev_b32 v%d, 15, v%d' % (T + 1, T + 1))
        su('v_lshl_add_u32 v%d, v%d, 4, v%d' % (vS, T, T + 1))
        su('s_lshl_b32 s%d, s%d, 8' % (S_T0, S_WAVE))
        su('s_add_u32 s%d, s%d, %d' % (S_T0, S_T0, D_TAB))
        su('v_lshl_add_u32 v%d, v%d, 4, s%d' % (vTW, T, S_T0))
        su('v_lshl_add_u32 v%d, v%d, 2, s%d' % (vTR, T, S_T0))
        su('s_lshl_b32 s%d, s%d, 7' % (S_SO, S_PN))
        su('s_mul_i32 s%d, s%d, %d' % (S_T0, S_PN, 224 * 1024))
        su('s_add_u32 s%d, s%d, %d' % (S_T0, S_T0, WS_HH))
        srd_off(su, SRD_Y, P_WS, 's%d' % S_T0, 2 * 224 * 1024)
        su('s_mul_i32 s%d, s%d, 7' % (S_PR, S_FT))
        su('s_add_u32 s%d, s%d, s%d' % (S_PR, S_PR, S_ODD))
        su('s_lshl_b32 s%d, s%d, 10' % (S_PR, S_PR))
        su('s_mul_i32 s%d, s%d, %d' % (S_SG, S_ODD, 8 * 1024 - 512))
        su('s_sub_u32 s%d, s%d, s%d' % (S_SG, S_PR, S_SG))
        su('s_add_u32 s%d, s%d, %d' % (S_SG, S_SG, 6 * 1024))
        NWP = 7 * opt.get('wpre', 3) - opt.get('n0', 5)
        n1 = opt.get('n1', 4)
        pre = self.dw[:NWP]; wops = self.dw[NWP:]
        p, ld, tg = pre[n1 - 1]
        pre[n1 - 1] = ([x.strip() for x in su.lines] + p, ld, tg)
        self.handoff(pre, n1, 0, S_PL, 32, vL, T + 4, 'c')

        accb = lambda tb, cb: 4 * (tb * 14 + cb)
        xr = lambda s, ks, tb: ar(32 * (s % U) + 16 * ks + 4 * tb, 4)
        xops = []
        for s in range(16):
            for ks in range(2):
                for tb in range(4):
                    p, t = divmod(tb, 2)
                    xops.append((['s_mov_b32 s%d, %d' % (S_XOFF, 4096 * s)] if ks == 0 and tb == 0 else [],
                                 'buffer_load_dwordx4 %s, v%d, s[%d:%d], s%d offen offset:%d %s' % (xr(s, ks, tb), vX, SRD_X0 + 4 * p, SRD_X0 + 4 * p + 3, S_XOFF, (2 * ks + t) * 1024, opt.get('xflag', 'sc1')), ('X', s, ks)))
        NPRO = opt.get('npro', 10)
        for it in xops[:NPRO]: self.issue(it)
        xops = xops[NPRO:]
        NT = opt.get('NT', 2)
        order = [(s, ks, cb) for s in range(16 - NT) for ks in range(2) for cb in range(14)]
        NF0 = len(order)
        order += [(s, ks, cb) for c in range(7) for cb in (c, 7 + c) for s in range(16 - NT, 16) for ks in range(2)]
        NF = len(order)
        D = opt.get('D', 4)
        def reads(gf):
            s, ks, cb = order[gf]; u = s % U; w = WRA + 4 * (gf % 7)
            return ['ds_read_b64_tr_b16 %s, v%d offset:%d' % (ar(w + 2 * h, 2), vRdB + (u >> 1),
                                                            (u & 1) * D_SB + (cb // 7) * 14336 + (ks * 32 + h * 16) * 224 + (cb % 7) * 32) for h in range(2)]
        extra = []
        for i in range(4):
            extra.append((opt.get('st_at', 60) + 2 * i, (['s_add_u32 s%d, s%d, %d' % (S_T1, S_SO, 8192 * i)],
                          'buffer_load_dwordx4 %s, v%d, s[%d:%d], s%d offen sc1' % (ar(AST + 4 * i, 4), vS, SRD_O, SRD_O + 3, S_T1), 'st')))
        if opt.get('eslow'):
            su2 = ['v_and_b32 v247, 31, v%d' % vL, 'v_lshlrev_b32 v247, 11, v247', 's_lshr_b32 s101, s2, 3', 's_lshl_b32 s101, s101, 16',
                   's_and_b32 s100, s2, 4', 's_lshl_b32 s100, s100, 8', 's_add_u32 s101, s101, s100', 's_add_u32 s101, s101, 384']
            for x in su2: a(x)
            extra.append((opt['eslow'], ([], 'buffer_load_dword v%d, v247, s[%d:%d], s101 offen' % (vJ, SRD_Z, SRD_Z + 3), None)))
        for g, kind, rnd in opt.get('touch', []):
            sd, so, n = (SRD_T, S_GU, 128) if kind == 'gu' else (SRD_Z, S_WD, 256)
            extra.append((g, (['s_add_u32 s%d, s%d, %d' % (S_TO, so, rnd * n * 8192)],
                              'buffer_load_dword v%d, v%d, s[%d:%d], s%d offen' % (vJ, vT, sd, sd + 3, S_TO), None)))
        span = opt.get('span', NF0 - 16); xf = opt.get('xfast', 14)
        wt = [1.0] * NF
        for g, _, _ in opt.get('touch', []):
            for x in range(g, min(NF, g + opt.get('win', 14))): wt[x] = opt.get('winw', 0.45)
        def spread(n, lo, hi, ph):
            cum = [0.0]
            for x in range(lo, hi): cum.append(cum[-1] + wt[x])
            r = []; x = 0
            for i in range(n):
                t = (i + ph) * cum[-1] / n
                while cum[x + 1] <= t: x += 1
                r.append(lo + x + (t - cum[x]) / wt[lo + x])
            return r
        pos = [(i, 1, it) for i, it in enumerate(xops[:xf])]
        pos += [(max(p, 28 * (it[2][1] - (U - 1))), 1, it) for p, it in zip(spread(len(xops) - xf, xf, span, 0), xops[xf:])]
        pos += [(max(p, 28 * (it[2][1] - (U - 2))), 2, it) for p, it in zip(spread(len(wops), xf, span - opt.get('wlead', 8), 0.5), wops)]
        sched = {}
        g = -1
        for ps, _, it in sorted(pos + [(g, 0, it) for g, it in extra], key=lambda x: x[:2]):
            g = max(g + 1, int(ps))
            sched[g] = it
            if it[2] and it[2][0] == 'W': assert g // 28 >= it[2][1] - (U - 2), (g, it[2])
            if it[2] and it[2][0] == 'X': assert g // 28 >= it[2][1] - (U - 1), (g, it[2])
        lastw = max(g for g, it in sched.items() if it[2] and it[2][0] == 'W')
        if opt.get('drop'): sched = {g: it for g, it in sched.items() if not (it[2] and it[2][0] in opt['drop'])}
        pres = {}
        for g, it in sched.items():
            assert len(it[0]) <= 2
            for k, p in enumerate(reversed(it[0])):
                slot = max(0, 4 * g - 2 * k)
                pres.setdefault(slot, []).insert(0, p)
        fl = Fill(e)
        m = [lambda: e.wait(vm=['st'])]
        for r in range(4): m.append('v_accvgpr_read_b32 v%d, a%d' % (T + r, AST + r))
        for i in range(1, 4):
            m += ['v_accvgpr_read_b32 v%d, a%d' % (T + 4 + r, AST + 4 * i + r) for r in range(4)]
            m += ['v_add_f32 v%d, v%d, v%d' % (T + r, T + r, T + 4 + r) for r in range(4)]
        m += allsum4([T, T + 1, T + 2, T + 3], T + 4)
        for r in range(4):
            m += ['v_mov_b32 v%d, 0x%x' % (T + 4 + r, f2u(1e-5)), 'v_fmac_f32 v%d, 0x%x, v%d' % (T + 4 + r, f2u(1.0 / 1024), T + r)]
        m += ['v_rsq_f32 v%d, v%d' % (T + r, T + 4 + r) for r in range(4)]
        m += ['v_lshlrev_b32 v%d, 16, v%d' % (T + 4, vL), 'v_and_b32 v%d, 0x300000, v%d' % (T + 4, T + 4),
              'v_and_b32 v%d, 0xff, v%d' % (T + 5, vX), 'v_or_b32 v%d, v%d, v%d' % (T + 4, T + 4, T + 5),
              ('ds_write_b128 v%d, v[%d:%d]' % (vTW, T, T + 3), 'tw'),
              's_lshl_b32 s%d, s%d, 20' % (S_T0, S_FT), 's_add_u32 s%d, s%d, s%d' % (S_T0, S_T0, S_SO), 's_add_u32 s%d, s%d, %d' % (S_T0, S_T0, SM_RSTD),
              'buffer_store_dwordx4 v[%d:%d], v%d, s[%d:%d], s%d offen sc1' % (T, T + 3, T + 4, SRD_O, SRD_O + 3, S_T0)]
        m += [('ds_read_b32 v%d, v%d offset:%d' % (vA + tb, vTR, 64 * tb), 'tr') for tb in range(4)]
        fl.add(m, 4 * opt.get('st_at', 60) + 160)
        fl.add([lambda: e.wait(lds=['tr'])] + ['v_mul_f32 v%d, 0x%x, v%d' % (vA + tb, f2u(-LOG2E), vA + tb) for tb in range(4)], 4 * opt.get('st_at', 60) + 260)
        fl.add(self.e_setup(), 4 * lastw + 4)
        def sig(c):
            o = []
            for tb in range(4): o += ['v_mul_f32 v%d, v%d, v%d' % (accb(tb, c) + r, vA + tb, accb(tb, c) + r) for r in range(4)]
            for tb in range(4): o += ['v_exp_f32 v%d, v%d' % (accb(tb, c) + r, accb(tb, c) + r) for r in range(4)]
            for tb in range(4): o += ['v_add_f32 v%d, 1.0, v%d' % (accb(tb, c) + r, accb(tb, c) + r) for r in range(4)]
            for tb in range(4): o += ['v_rcp_f32 v%d, v%d' % (accb(tb, c) + r, accb(tb, c) + r) for r in range(4)]
            return o
        def fin(c):
            o = []
            for tb in range(4):
                b = accb(tb, c); u = accb(tb, 7 + c)
                o += [pk('mul', b + r, b + r, u + r) for r in (0, 2)]
            for tb in range(4):
                b = accb(tb, c); d = accb(tb, 7 + (c & ~1)) + 2 * (c & 1)
                o += ['v_cvt_pk_bf16_f32 v%d, v%d, v%d' % (d + r, b + 2 * r, b + 2 * r + 1) for r in range(2)]
                p, t = divmod(tb, 2); u = accb(tb, 7 + (c & ~1))
                if c == 6:
                    if t == 0: o.append('s_add_u32 s%d, s%d, %d' % (S_T1, S_SG, p * 224 * 1024))
                    o.append(('buffer_store_dwordx2 v[%d:%d], v%d, s[%d:%d], s%d offen offset:%d sc1' % (u, u + 1, self.dX8, SRD_Y, SRD_Y + 3, S_T1, 1024 * t), 'out'))
                elif c & 1:
                    if t == 0: o.append('s_add_u32 s%d, s%d, %d' % (S_T1, S_PR, p * 224 * 1024 + (c >> 1) * 2048))
                    o.append(('buffer_store_dwordx4 v[%d:%d], v%d, s[%d:%d], s%d offen offset:%d sc1' % (u, u + 3, vX, SRD_Y, SRD_Y + 3, S_T1, 1024 * t), 'out'))
            return o
        B0 = 4 * NF0; BL = 8 * NT
        for c in range(7):
            fl.add(sig(c), B0 + BL * (2 * c + 1) + 6)
            if c < 6: fl.add(unpk(fin(c)), B0 + BL * (2 * c + 2) + 6)
        CAP = opt.get('cap', 5)
        for gf in range(D):
            for r in reads(gf): e(r, ('w', gf))
        e.wait(lds=[('w', 0)], vm=[('X', 0, 0)])
        self.mark('d_go')
        for gf in range(NF):
            s, ks, cb = order[gf]
            if gf == NF0: self.mark('d_tail')
            if gf < NF0 and gf % 28 == 0: self.mark('d_s%d' % s)
            rd = reads(gf + D) if gf + D < NF else []
            for tb in range(4):
                idx = 4 * gf + tb
                c = vr(accb(tb, cb), 4)
                a('v_mfma_f32_16x16x32_bf16 %s, %s, %s, %s' % (c, ar(WRA + 4 * (gf % 7), 4), xr(s, ks, tb), '0' if gf < 14 else c))
                used = 0
                cap = CAP if gf >= NF0 else 2
                if idx in pres:
                    for p in pres[idx]: a(p)
                    used += len(pres[idx]) - 1
                elif tb < 3 and not (tb == 1 and gf in sched): fl.pre(idx)
                if tb in (0, 2) and rd:
                    e(rd[tb >> 1], ('w', gf + D)); used += 1
                if tb == 1 and gf in sched:
                    e(sched[gf][1], sched[gf][2]); used = cap
                if tb == 3 and gf + 1 < NF:
                    ns, nks, _ = order[gf + 1]
                    vm = [('X', ns, nks)]
                    bar = False
                    if gf + 1 + D == NF0: vm += [('W', x) for x in range(16 - NT, 16)]; bar = True
                    elif gf + 1 + D < NF0 and (gf + 1 + D) % 28 == 0: vm.append(('W', order[gf + 1 + D][0])); bar = True
                    assert not any(g2 > gf and it[2] in vm for g2, it in sched.items()), (gf, vm)
                    e.wait(lds=[('w', gf + 1)], vm=vm)
                    if bar: a('s_barrier'); used = 1
                fl.post(idx, used, cap)
        self.mark('d_loopend')
        a('s_barrier')
        n0 = self.opt.get('e', {}).get('n0', 4)
        for it in self.ew[:n0]: self.issue(it)
        self.ew = self.ew[n0:]
        fl.flush()
        a('s_nop 7')
        for x in fin(6):
            if isinstance(x, tuple): e(*x)
            else: a(x)
        a('s_lshl_b32 s0, s%d, 7' % S_FT)
        a('s_add_u32 s0, s0, s%d' % S_PL)
        a('s_add_u32 s0, s0, %d' % (256 * 128))

    E_SLOTS = 10
    S_ERT, S_ECT, S_EWV, S_EPN = 25, 26, 29, 30
    def e_setup(self):
        vL, vD, t = self.dL, self.dD, self.dTMP
        S_RT, S_CT, S_WV, S_PN = self.S_ERT, self.S_ECT, self.S_EWV, self.S_EPN
        a = self.a
        o = lines(swz_src, vL, 2048, vD, t, t + 1)
        o += ['s_lshl_b32 s68, s%d, 16' % S_WAVE, 'v_add_u32 v%d, s68, v%d' % (vD, vD)]
        o += ['v_add_u32 v%d, %d, v%d' % (vD + i, i * (8 * 2048 - 1024), vD) for i in range(1, 4)]
        o += ['s_lshl_b32 s%d, s%d, 12' % (S_WV, S_WAVE), 's_lshl_b32 s69, s%d, 7' % S_CT,
              lambda: (a('s_add_u32 s%d, s%d, s69' % (SRD_W, P_WD)), a('s_addc_u32 s%d, s%d, 0' % (SRD_W + 1, P_WD + 1))),
              's_sub_u32 s%d, %d, s69' % (SRD_W + 2, 3584 * 2048)]
        self.ew = []
        for s in range(28):
            for i in range(4):
                pre = ['s_mov_b32 s%d, %d' % (S_WOFF, s * 128 * 2048), 's_add_u32 m0, s%d, %d' % (S_WV, (s % self.E_SLOTS) * 16384)] if i == 0 else []
                self.ew.append((pre, 'buffer_load_dwordx4 v%d, s[%d:%d], s%d offen offset:%d lds' % (vD + i, SRD_W, SRD_W + 3, S_WOFF, 1024 * i), ('W', s)))
        return o

    def phase_e(self):
        a, e, opt = self.a, self.e, self.opt.get('e', {})
        vL, vX, vD = self.dL, self.dX, self.dD
        S_RT, S_CT, S_WV, S_PN = self.S_ERT, self.S_ECT, self.S_EWV, self.S_EPN
        S_T0, S_T1, S_PL = 27, 28, 31
        UW, UX = self.E_SLOTS, 6
        vRdB, vRow, vTok, vT, vJ = 240, 234, 235, 237, 238
        H = 252
        RES, SC, T, WR = 64, 80, 88, 96
        su = Asm()
        su('s_mul_i32 s%d, s%d, %d' % (S_T0, S_PN, 3584 * 64))
        su('s_add_u32 s%d, s%d, %d' % (S_T0, S_T0, WS_HH))
        srd_off(su, SRD_X0, P_WS, 's%d' % S_T0, 3584 * 64)
        su('s_lshl_b32 s54, s%d, 16' % S_PN)
        su('s_lshl_b32 s%d, s%d, 12' % (S_T0, S_CT))
        su('s_add_u32 s%d, s%d, s54' % (S_T0, S_T0))
        su('s_add_u32 s%d, s%d, %d' % (S_T0, S_T0, WS_H))
        srd_off(su, SRD_X1, P_WS, 's%d' % S_T0, 4096)
        su('s_add_u32 s%d, s54, s69' % S_T0)
        srd_off(su, SRD_Y, P_OUT, 's%d' % S_T0, 31 * 2048 + 128)
        su('s_lshr_b32 s%d, s%d, 1' % (S_PL, S_RT))
        su('s_lshl_b32 s%d, s%d, 12' % (S_PL, S_PL))
        su('s_add_u32 s%d, s%d, %d' % (S_PL, S_PL, CNT_OFF + 512 * 128))
        su('s_mov_b32 s61, 32768')
        su('s_mov_b32 s60, 0xffff0000')
        su('s_lshl_b32 s62, s%d, 7' % S_PN)
        su('s_add_u32 s63, s62, %d' % SM_MH)
        su('s_add_u32 s62, s62, %d' % SM_RSTD)
        su('v_and_b32 v%d, 15, v%d' % (H, vL))
        su('v_lshlrev_b32 v%d, 2, v%d' % (vTok, H))
        su('v_lshlrev_b32 v%d, 11, v%d' % (vT, H))
        su('v_bfe_u32 v%d, v%d, 4, 1' % (H + 1, vL))
        su('v_lshl_add_u32 v%d, v%d, 5, v%d' % (H, H + 1, vT))
        su('v_lshrrev_b32 v%d, 5, v%d' % (H + 1, vL))
        su('v_lshl_add_u32 v%d, v%d, 4, v%d' % (vRow, H + 1, H))
        swz_rd(su, vL, vRdB, H, H + 1)
        for u in range(8): su('v_add_u32 v%d, 0x10000, v%d' % (vRdB + 4 + u, vRdB + u))
        su('s_lshr_b32 s55, s2, 3')
        su('s_lshl_b32 s55, s55, 15')
        su('s_and_b32 s%d, s2, 4' % S_T0)
        su('s_lshl_b32 s%d, s%d, 8' % (S_T0, S_T0))
        su('s_add_u32 s55, s55, s%d' % S_T0)
        su('s_add_u32 s55, s55, 384')
        NWP = 4 * opt.get('wpre', 8) - opt.get('n0', 4)
        n1 = opt.get('n1', 6)
        pre = self.ew[:NWP]; wops = self.ew[NWP:]
        p, ld, tg = pre[n1 - 2]
        pre[n1 - 2] = ([x.strip() for x in su.lines] + p, ld, tg)
        self.handoff(pre, n1, 0, S_PL, 32, vL, H, 'd')
        accb = lambda tb, cb: 4 * (tb * 4 + cb)
        xr = lambda s, ks, tb: ar(32 * (s % UX) + 8 * ks + 4 * tb, 4)
        xops = []
        for s in range(28):
            for i in range(8):
                pre = ['s_mov_b32 s%d, %d' % (S_XOFF, 8192 * s + 4096 * (i >> 2))] if i & 3 == 0 else []
                if (4 * s + (i >> 1)) % 7 == 3:
                    b = 32 * (s % UX) + 4 * i
                    ld = '\n'.join('buffer_load_dwordx2 %s, v%d, s[%d:%d], s%d offen offset:%d sc1' % (ar(b + 2 * h, 2), self.dX8, SRD_X0, SRD_X0 + 3, S_XOFF, (i & 3) * 1024 + 512 * h) for h in range(2))
                else:
                    ld = 'buffer_load_dwordx4 %s, v%d, s[%d:%d], s%d offen offset:%d sc1' % (xr(s, i >> 1, i & 1), vX, SRD_X0, SRD_X0 + 3, S_XOFF, (i & 3) * 1024)
                xops.append((pre, ld, ('X', s, i >> 1)))
        NPRO = opt.get('npro', 12)
        for it in xops[:NPRO]: self.issue(it)
        xops = xops[NPRO:]
        late = []
        for tb in range(2):
            for kk in range(2):
                r = RES + 4 * (tb * 2 + kk)
                late.append(([], 'buffer_load_dwordx4 v[%d:%d], v%d, s[%d:%d], 0 offen offset:%d sc1' % (r, r + 3, vX, SRD_X1, SRD_X1 + 3, kk * 2048 + tb * 1024), 'res'))
        for tb in range(2):
            late.append(([], 'buffer_load_dword v%d, v%d, s[%d:%d], s63 offen offset:%d sc1' % (SC + tb, vTok, SRD_O, SRD_O + 3, 64 * tb), 'res'))
            late.append(([], 'buffer_load_dword v%d, v%d, s[%d:%d], s62 offen offset:%d sc1' % (SC + 2 + tb, vTok, SRD_O, SRD_O + 3, 64 * tb), 'res'))
        NF = 28 * 16; D = 4; RING = 8
        pos = [(2 * i, 1, it) for i, it in enumerate(xops)]
        wend = 16 * opt.get('wend', 24)
        pos += [(max((i + 0.5) * wend / len(wops), 16 * (it[2][1] - (UW - 2))), 2, it) for i, it in enumerate(wops)]
        pos += [(16 * opt.get('res_at', 22) + 4 * i + 1, 0, it) for i, it in enumerate(late)]
        if opt.get('slow', 1):
            first = (4 * opt.get('wpre', 8) + 15) // 16
            for r in range(first, 7):
                at = min(ps for ps, k, it in pos if k == 2 and it[2][1] >= 4 * r) - 16 * opt.get('slow_lead', 3)
                pos.append((max(0, at), 0, (['s_add_u32 s%d, s55, %d' % (S_T1, r * 512 * 2048)],
                                            'buffer_load_dword v%d, v%d, s[%d:%d], s%d offen' % (vJ, vT, SRD_Z, SRD_Z + 3, S_T1), None)))
        sched = {}
        g = -1
        for ps, _, it in sorted(pos, key=lambda x: x[:2]):
            g = max(g + 1, int(ps))
            sched[g] = it
            if it[2] and it[2][0] == 'W': assert g // 16 >= it[2][1] - (UW - 2), (g, it[2])
            if it[2] and it[2][0] == 'X': assert g // 16 >= it[2][1] - (UX - 1), (g, it[2])
        def reads(gf):
            s, f = divmod(gf, 16); ks, cb = divmod(f, 4); w = WR + 4 * (gf % RING)
            o = (s % UW) * 16384 + ks * 4096
            return ['ds_read_b64_tr_b16 %s, v%d offset:%d' % (vr(w + 2 * h, 2), vRdB + cb + 4 * (o >> 16), (o & 0xffff) + 2048 * h) for h in range(2)]
        for gf in range(D):
            for r in reads(gf): e(r, ('w', gf))
        e.wait(lds=[('w', 1)], vm=[('X', 0, 0)])
        self.mark('e_go')
        HF = 128
        fl = Fill(e)
        m = [lambda: e.wait(vm=['res'])]
        for i in range(16):
            m += ['v_lshlrev_b32 v%d, 16, v%d' % (HF + 2 * i, RES + i), 'v_and_b32 v%d, s60, v%d' % (HF + 2 * i + 1, RES + i)]
            m += ['v_add_f32 v%d, v%d, v%d' % (HF + 2 * i + h, SC + (i >> 3), HF + 2 * i + h) for h in range(2)]
        fl.add(m, 32 * (opt.get('res_at', 22) + 3) + 16)
        for gf in range(NF):
            s, f = divmod(gf, 16); ks, cb = divmod(f, 4)
            if f == 0: self.mark('e_s%d' % s)
            for tb in range(2):
                idx = 2 * gf + tb
                c = vr(accb(tb, cb), 4)
                a('v_mfma_f32_16x16x32_bf16 %s, %s, %s, %s' % (c, vr(WR + 4 * (gf % RING), 4), xr(s, ks, tb), '0' if gf < 4 else c))
                used = 0
                if tb == 0:
                    if gf in sched and sched[gf][0]:
                        for p in sched[gf][0]: a(p)
                    else: fl.pre(idx)
                    if gf + D < NF:
                        for r in reads(gf + D): e(r, ('w', gf + D))
                        used = 2
                else:
                    if gf & 1 and gf + 1 < NF:
                        vm = [('X',) + divmod((gf + 1) // 4, 4)]; bar = False
                        if (gf + 1 + D) % 16 == 0 and gf + 1 + D < NF: vm.append(('W', s + 1)); bar = True
                        assert not any(g2 >= gf and it[2] in vm for g2, it in sched.items()), (gf, vm)
                        e.wait(lds=[('w', gf + 2)], vm=vm)
                        if bar: a('s_barrier')
                    if gf in sched: e(*sched[gf][1:]); used = 2
                fl.post(idx, used, 3)
        self.mark('e_loopend')
        fl.flush()
        a('s_nop 4')
        sf = opt.get('sflag', '')
        for tb in range(2):
            x, md = bc(SC + 2 + tb, 1, 3)
            for i in range(8 * tb, 8 * tb + 8): a(pk('fma', 2 * i, 2 * i, x, HF + 2 * i, md))
            for i in range(8 * tb, 8 * tb + 8): a('v_cvt_pk_bf16_f32 v%d, v%d, v%d' % (RES + i, 2 * i, 2 * i + 1))
            a('s_nop 1')
            for kk in range(2):
                r = RES + 8 * tb + 4 * kk
                a('v_permlane16_swap_b32 v%d, v%d' % (r, r + 2))
                a('v_permlane16_swap_b32 v%d, v%d' % (r + 1, r + 3))
            for kk in range(2):
                r = RES + 8 * tb + 4 * kk
                a('buffer_store_dwordx4 v[%d:%d], v%d, s[%d:%d], %s offen offset:%d %s' % (r, r + 3, vRow, SRD_Y, SRD_Y + 3, 's61' if tb else '0', 64 * kk, sf))

    def build(self):
        a = self.a
        kern_a2(a, self.name, 0, self.stamp, self.opt.get('a', {}), self)
        self.phase_c()
        self.phase_d()
        self.phase_e()
        if self.stamp:
            a('s_waitcnt vmcnt(0)')
            self.st.take(a)
            a('s_lshl_b32 s27, s%d, 6' % S_WAVE)
            a('v_add_u32 v40, s27, v%d' % self.dL)
            self.st.flush(a, P_WS, 's2', 44, 'v40')
        a.label(self.end)
        a('s_endpgm')
        a.label('Lcode_end')
        a('s_endpgm')
        kernel_desc(a, self.name, 512, 102, 256)

KNAME = 'sequential_preLN__linear_attn_block__glu_gated_glu__prompt_kernel'
def gen(path, opt=None, stamp=False, header='', as_list=True):
    a = Asm()
    if header: a.raw(header.rstrip('\n'))
    a.raw('; @launch %sgrid=(256,1,1) block=(256,1,1) lds=%d' % ('kernel=%s ' % KNAME if as_list else '', A2_LDS))
    a.raw('.amdgcn_target "amdgcn-amd-amdhsa--gfx950"')
    Mega(a, KNAME, stamp, opt or {}).build()
    import warm
    a.lines = warm.add_pads(a.lines, (opt or {}).get('warm', {}))
    open(path, 'w').write(a.text())
BEST = {'sleep': 2, 'warm': {'a': (1, 15, [0, 1, 2, 3]), 'd2': (15, 22, [1, 2, 3])}, 'a': {'gu': [0, 1, None, None], 'gu2': [2, None, None, None], 'help': 64, 'arr': 2, 'sig': 38, 'poll2': 180, 'chk2': 230},
        'd': {'eslow': 380, 'touch': [(30, 'gu', 3), (75, 'gu', 4), (120, 'gu', 5), (165, 'gu', 6), (210, 'wd', 0), (255, 'wd', 1), (300, 'wd', 2), (345, 'wd', 3)]}}
if __name__ == '__main__':
    import sys
    HEADER = open('sequential_preLN__linear_attn_block__glu_gated_glu__prompt.s.ref').read().split('; Override')[0]
    gen(sys.argv[1] if len(sys.argv) > 1 else 'm.s', BEST, False, HEADER, False)
```
